```python
import torch

def _softmax(x, axis=-1):
    return torch.softmax(x, dim=axis)

def _gelu(x):
    return torch.nn.functional.gelu(x, approximate='tanh')

def _silu(x):
    return torch.nn.functional.silu(x)

def _sigmoid(x):
    return torch.sigmoid(x)

def _layernorm(x, axis=-1, eps=1e-05):
    m = x.mean(dim=axis, keepdim=True)
    v = x.var(dim=axis, keepdim=True, unbiased=False)
    return (x - m) / torch.sqrt(v + eps)

def _scatter_add(tgt, idx, src, axis=0):
    return tgt.clone().index_add_(axis, idx, src)

def _segment_sum(src, seg, n):
    out = torch.zeros((n,) + src.shape[1:], dtype=src.dtype)
    return out.index_add_(0, seg, src)

def _pad(x, pw):
    flat = tuple((v for pair in reversed(pw) for v in pair))
    return torch.nn.functional.pad(x, flat)
kernel_name = 'adaLN_cond__mha_block_cached__glu_gated_reglu__prompt'

def setup_inputs():

    _w = lambda a: (lambda t: t.to(torch.bfloat16) if t.is_floating_point() else t)(torch.as_tensor(a))

    def _A_setup():
        B, Sq, D = (1, 2048, 576)
        H, Sk, Dh = (32, 2048, 128)
        return {'x': _w((lambda *s: torch.randn(*s, dtype=torch.bfloat16) * 0.05)(B, Sq, D)), 'k_cache': _w((lambda *s: torch.randn(*s, dtype=torch.bfloat16) * 1.6)(B, H, Sk, Dh)), 'v_cache': _w((lambda *s: torch.randn(*s, dtype=torch.bfloat16) * 0.8)(B, H, Sk, Dh)), 'wq': _w((lambda *s: torch.randn(*s, dtype=torch.bfloat16) * 1.6)(D, H * Dh) * D ** (-0.5)), 'wo': _w((lambda *s: torch.randn(*s, dtype=torch.bfloat16) * 0.8)(H * Dh, D) * (H * Dh) ** (-0.5))}
    _A_in = _A_setup()

    def _B_setup():
        B, S, D, F = (1, 2048, 576, 4608)
        return {'x': _w((lambda *s: torch.randn(*s, dtype=torch.bfloat16) * 0.05)(B, S, D)), 'W_gate': _w((lambda *s: torch.randn(*s, dtype=torch.bfloat16) * 0.4)(D, F) * (2.0 / D) ** 0.5), 'W_up': _w((lambda *s: torch.randn(*s, dtype=torch.bfloat16) * 0.4)(D, F) * (2.0 / D) ** 0.5), 'W_down': _w((lambda *s: torch.randn(*s, dtype=torch.bfloat16) * 0.4)(F, D) * (1.0 / F) ** 0.5)}
    _B_in = _B_setup()
    return {'A_x': _A_in['x'], 'A_k_cache': _A_in['k_cache'], 'A_v_cache': _A_in['v_cache'], 'A_wq': _A_in['wq'], 'A_wo': _A_in['wo'], 'B_x': _B_in['x'], 'B_W_gate': _B_in['W_gate'], 'B_W_up': _B_in['W_up'], 'B_W_down': _B_in['W_down'], 'c': _w((lambda *s: torch.randn(*s, dtype=torch.bfloat16) * 0.1)(1, 576) * 8.0), 'w_mod': _w((lambda *s: torch.randn(*s, dtype=torch.bfloat16) * 0.1)(576, 6 * 576) * 576 ** (-0.5) * 8.0)}

def reference(A_x, A_k_cache, A_v_cache, A_wq, A_wo, B_x, B_W_gate, B_W_up, B_W_down, c, w_mod):

    def _A_ref(x, k_cache, v_cache, wq, wo):
        B, Sq, D = x.shape
        H, Dh = (32, 128)
        q = (lambda x, *d: x.permute(*d))((x @ wq).reshape(B, Sq, H, Dh), 0, 2, 1, 3)
        scores = torch.einsum('bhqd,bhkd->bhqk', q, k_cache) * Dh ** (-0.5)
        p = _softmax(scores, axis=-1)
        o = torch.einsum('bhqk,bhkd->bhqd', p, v_cache)
        return (lambda x, *d: x.permute(*d))(o, 0, 2, 1, 3).reshape(B, Sq, H * Dh) @ wo

    def _B_ref(x, W_gate, W_up, W_down):
        gate = torch.einsum('bsd,df->bsf', x, W_gate)
        up = torch.einsum('bsd,df->bsf', x, W_up)
        gate = gate * (lambda x, dt: x.to(dt))(gate > 0, gate.dtype)
        h = gate * up
        return torch.einsum('bsf,fd->bsd', h, W_down)
    x = A_x
    mod = (_silu(c) @ w_mod).reshape(c.shape[0], 6, 1, -1)
    sa, ca, ga, sb, cb, gb = (mod[:, 0].clone(), mod[:, 1].clone(), mod[:, 2].clone(), mod[:, 3].clone(), mod[:, 4].clone(), mod[:, 5].clone())
    h = _layernorm(x, axis=-1) * (1 + ca) + sa
    x = x + ga * _A_ref(h, A_k_cache, A_v_cache, A_wq, A_wo)
    h = _layernorm(x, axis=-1) * (1 + cb) + sb
    x = x + gb * _B_ref(h, B_W_gate, B_W_up, B_W_down)
    return x
```

```python
from fw import *
import layout as L
import struct, math

def f32(x):
    return '0x%08x' % struct.unpack('<I', struct.pack('<f', x))[0]

AK = 16
AV = 24
DK = 28
DV = 32
LSUM = 36
USUM = 38
ET = 40
FT = 48
SB = 64
NM = 128
PB = 160
FP = 192
PR = 224
NPOOL = 8
LAG = 7

KRING, VRING, XTRA = 0, 65536, 131072


def S(par, qb, r=0): return SB + par * 32 + qb * 16 + r
def P(par, qb, r=0): return PB + par * 16 + qb * 8 + r
def Oacc(db, qb): return (db * 2 + qb) * 16
def Qreg(qb, s): return 128 + (qb * 8 + s) * 4
def vr(b, n): return f'v[{b}:{b+n-1}]'
def ar(b, n): return f'a[{b}:{b+n-1}]'


def k_attn():
    k = K('attn_kernel')
    k('s_cmp_ge_u32 s2, 256')
    k('s_cbranch_scc1 .attn_end')
    k(f's_load_dwordx4 s[4:7], s[0:1], {A_K}')
    k(f's_load_dwordx2 s[32:33], s[0:1], {A_WQ}')
    k(f's_load_dwordx2 s[34:35], s[0:1], {WS}')
    k('v_lshrrev_b32 v1, 6, v0')
    k('v_and_b32 v2, 63, v0')
    k('s_nop 0')
    k('v_readfirstlane_b32 s3, v1')
    k('s_and_b32 s24, s2, 7')
    k('s_lshl_b32 s24, s24, 2')
    k('s_bfe_u32 s25, s2, 0x20003')
    k('s_add_u32 s24, s24, s25')
    k('s_lshr_b32 s25, s2, 5')
    k('s_lshl_b32 s26, s3, 10')
    k('s_waitcnt lgkmcnt(0)')
    k('s_lshl_b32 s31, s24, 19')
    for d, b in ((8, 4), (12, 6)):
        k(f's_add_u32 s{d}, s{b}, s31')
        k(f's_addc_u32 s{d+1}, s{b+1}, 0')
        k(f's_sub_u32 s{d+2}, 0x1000000, s31')
        k(f's_mov_b32 s{d+3}, 0x00020000')
    srd(k, 16, 32, 576 * 4096 * 2)
    srd(k, 20, 34, 2048 * 576 * 2, L.H1)
    k('v_and_b32 v3, 15, v2')
    k('v_lshrrev_b32 v4, 4, v2')
    k('v_lshrrev_b32 v5, 5, v2')
    k('v_and_b32 v6, 31, v2')
    k('v_lshrrev_b32 v7, 2, v3')
    k('v_and_b32 v8, 3, v2')
    k('v_xor_b32 v9, v5, v3')
    k('v_lshlrev_b32 v9, 4, v9')
    k('v_lshl_add_u32 v9, v6, 8, v9')
    for s in range(8):
        k(f'v_xor_b32 v{AK+s}, {s << 5}, v9')
    k('v_and_b32 v10, 1, v4')
    k('v_lshlrev_b32 v10, 1, v10')
    k('v_lshrrev_b32 v11, 1, v8')
    k('v_add_u32 v10, v10, v11')
    k('v_lshlrev_b32 v10, 4, v10')
    k('v_and_b32 v11, 1, v2')
    k('v_lshl_add_u32 v10, v11, 3, v10')
    k('v_lshl_add_u32 v10, v7, 8, v10')
    for db in range(4):
        k(f'v_xor_b32 v11, {db}, v7')
        k(f'v_lshl_add_u32 v11, v11, 6, v10')
        k(f'v_lshl_add_u32 v{PR+db}, v5, 11, v11')
        k(f'v_lshl_add_u32 v11, v5, 10, v11')
        k(f'v_add_u32 v{AV+db}, {VRING}, v11')
    k('s_lshl_b32 s31, s3, 2')
    k('v_add_u32 v9, s31, v4')
    k('v_xor_b32 v10, v3, v9')
    k('v_lshlrev_b32 v10, 4, v10')
    k('v_lshlrev_b32 v11, 2, v4')
    k('v_xor_b32 v11, v3, v11')
    k('v_lshlrev_b32 v11, 4, v11')
    k('s_lshl_b32 s31, s24, 8')
    for n in range(4):
        k(f'v_add_u32 v12, {16*n}, v9')
        k(f'v_lshl_add_u32 v{DK+n}, v12, 8, v10')
        k(f'v_lshl_add_u32 v{DV+n}, v12, 8, v11')
        k(f'v_lshl_add_u32 v{PR+6+n}, v12, 13, v11')
        k(f'v_add_u32 v{PR+6+n}, s31, v{PR+6+n}')
    k('s_lshl_b32 s31, s25, 8')
    k('s_lshl_b32 s36, s3, 6')
    k('s_add_u32 s31, s31, s36')
    k('s_mov_b32 s37, s31')
    k('v_add_u32 v9, s31, v6')
    k('s_movk_i32 s36, 1152')
    k('v_mul_lo_u32 v9, v9, s36')
    k(f'v_lshl_add_u32 v{PR+4}, v5, 4, v9')
    k(f'v_add_u32 v{PR+5}, {32*1152}, v{PR+4}')

    def dma(tag, vo, srdreg, soff, ldsoff):
        k(f's_add_u32 m0, s26, {ldsoff}')
        k('s_nop 0')
        k.vmem(tag, f'buffer_load_dwordx4 v{vo}, s[{srdreg}:{srdreg+3}], {soff} offen lds')

    wslots = [XTRA, XTRA + 16384, KRING + 32768, KRING + 49152, VRING + 32768, VRING + 49152]
    wslots += wslots[:3]
    def wq_dma(j):
        k(f's_mov_b32 s36, {j * 64 * 8192}')
        for n in range(4):
            dma(('wq', j), PR + 6 + n, 16, 's36', wslots[j] + n * 4096)
    def h_load(j):
        for s in range(4):
            for qb in range(2):
                b = SB + ((j % 3) * 8 + s * 2 + qb) * 4
                k.vmem(('h', j), f'buffer_load_dwordx4 {vr(b,4)}, v{PR+4+qb}, s[20:23], 0 offen offset:{(j*4+s)*32}')
    wq_dma(0); h_load(0); wq_dma(1); h_load(1)
    for j in range(2, 6):
        wq_dma(j)
    for t in range(2):
        k(f's_mov_b32 s36, {t * 16384}')
        for n in range(4):
            dma(('kv', t), DK + n, 8, 's36', KRING + t * 16384 + n * 4096)
        for n in range(4):
            dma(('kv', t), DV + n, 12, 's36', VRING + t * 16384 + n * 4096)
    fcount = [0]
    def pool():
        b = FP + (fcount[0] % NPOOL) * 4
        fcount[0] += 1
        return b
    for j in range(9):
        k.wait(vm=[('wq', j), ('h', j)])
        k('s_barrier')
        if j >= 1 and j + 5 <= 8:
            wq_dma(j + 5)
        if j + 2 <= 8:
            h_load(j + 2)
        for db in range(4):
            k(f'v_add_u32 v{PR+10+db}, {wslots[j]}, v{PR+db}')
        frs = [(s, db) for s in range(4) for db in range(4)]
        bufs = {}
        def rd(i):
            s, db = frs[i]
            b = pool(); bufs[i] = b
            k.lds(('wf', j, i), f'ds_read_b64_tr_b16 {vr(b,2)}, v{PR+10+db} offset:{s*4096}')
            k.lds(('wf', j, i), f'ds_read_b64_tr_b16 {vr(b+2,2)}, v{PR+10+db} offset:{s*4096+1024}')
        for i in range(4):
            rd(i)
        for i, (s, db) in enumerate(frs):
            if i + 4 < 16:
                rd(i + 4)
            k.wait(lg=('wf', j, i))
            for qb in range(2):
                hb = SB + ((j % 3) * 8 + s * 2 + qb) * 4
                c = '0' if (j == 0 and s == 0) else ar(Oacc(db, qb), 16)
                k(f'v_mfma_f32_32x32x16_bf16 {ar(Oacc(db,qb),16)}, {vr(bufs[i],4)}, {vr(hb,4)}, {c}')
    k('s_nop 15')
    k('s_nop 7')
    k(f's_mov_b32 s36, {f32(math.log2(math.e) / math.sqrt(128.0))}')
    for db in range(4):
        for qb in range(2):
            for r in range(16):
                k(f'v_accvgpr_read_b32 v{SB+r}, a{Oacc(db,qb)+r}')
            for r in range(16):
                k(f'v_mul_f32 v{SB+r}, s36, v{SB+r}')
            for p in range(8):
                k(f'v_cvt_pk_bf16_f32 v{SB+16+p}, v{SB+2*p}, v{SB+2*p+1}')
            k('s_nop 1')
            for g0 in (0, 2):
                x, y = SB + 16 + 2 * g0, SB + 16 + 2 * g0 + 2
                k(f'v_permlane32_swap_b32 v{x}, v{y}')
                k(f'v_permlane32_swap_b32 v{x+1}, v{y+1}')
            k('s_nop 0')
            for p in range(8):
                k(f'v_accvgpr_write_b32 a{Qreg(qb, 2*db + p//4) + p%4}, v{SB+16+p}')
    for r in range(128):
        k(f'v_accvgpr_write_b32 a{r}, 0')
    for r in range(32):
        k(f'v_mov_b32 v{NM+r}, 0')
    k(f'v_mov_b32 v{LSUM}, 0')
    k(f'v_mov_b32 v{LSUM+1}, 0')
    k('s_mov_b32 s29, -1.0')
    k('s_mov_b32 s30, 0xff800000')
    k('s_mov_b32 s27, 32768')
    k('s_mov_b32 s28, 8')
    k.wait_all()

    NIT = 8 * 4
    G0 = -64
    fills = {}
    def add(pos, fn, prio=5):
        fills.setdefault(pos, []).append((prio, len(fills.get(pos, [])), fn))
    mf = {}
    fragbuf = {}
    usel = []
    for i in range(-1, NIT):
        u = i + 1
        for s in range(8):
            usel.append((32 * i + 2 * s, ('K', u, s)))
        if i >= 0:
            for ks in range(2):
                for db in range(4):
                    usel.append((32 * i + 16 + 2 * (4 * ks + db), ('V', i, ks, db)))
    fcount[0] = 0
    for pos, tag in usel:
        b = pool(); fragbuf[tag] = b
        if tag[0] == 'K':
            _, u, s = tag
            off = KRING + ((u // 2) % 4) * 16384 + (u % 2) * 8192
            add(pos - LAG, lambda tag=tag, b=b, s=s, off=off: k.lds(tag, f'ds_read_b128 {vr(b,4)}, v{AK+s} offset:{off}'), 1)
        else:
            _, u, ks, db = tag
            off = ((u // 2) % 4) * 16384 + (u % 2) * 8192 + ks * 4096
            add(pos - LAG, lambda tag=tag, b=b, db=db, off=off: k.lds(tag, f'ds_read_b64_tr_b16 {vr(b,2)}, v{AV+db} offset:{off}'), 1)
            add(pos - LAG + 1, lambda tag=tag, b=b, db=db, off=off: k.lds(tag, f'ds_read_b64_tr_b16 {vr(b+2,2)}, v{AV+db} offset:{off+2048}'), 1)
    for i in range(-1, NIT):
        u = i + 1
        for s in range(8):
            for qb in range(2):
                d = vr(S(u % 2, qb), 16)
                c = vr(NM + 16 * qb, 16) if s == 0 else d
                mf[32 * i + 2 * s + qb] = (f'v_mfma_f32_32x32x16_bf16 {d}, {vr(fragbuf[("K",u,s)],4)}, {ar(Qreg(qb,s),4)}, {c}', ('K', u, s))
        if i >= 0:
            for ks in range(2):
                for db in range(4):
                    for qb in range(2):
                        o = ar(Oacc(db, qb), 16)
                        mf[32 * i + 16 + 2 * (4 * ks + db) + qb] = (
                            f'v_mfma_f32_32x32x16_bf16 {o}, {vr(fragbuf[("V",i,ks,db)],4)}, {vr(P(i%2,qb,4*ks),4)}, {o}', ('V', i, ks, db))
    def sm_ops(par):
        ops = []
        n = 0
        pend = None
        for qb in range(2):
            for j in range(8):
                a, b = ET + (2 * n) % 8, ET + (2 * n + 1) % 8
                n += 1
                ops.append(f'v_exp_f32 v{a}, v{S(par,qb,2*j)}')
                ops.append(f'v_exp_f32 v{b}, v{S(par,qb,2*j+1)}')
                if pend: ops.extend(pend)
                if j == 0:
                    pend = [f'v_add_f32 v{USUM+qb}, v{a}, v{b}']
                else:
                    pend = [f'v_add_f32 v{USUM+qb}, v{USUM+qb}, v{a}', f'v_add_f32 v{USUM+qb}, v{USUM+qb}, v{b}']
                pend.append(f'v_cvt_pk_bf16_f32 v{P(par,qb,j)}, v{a}, v{b}')
        ops.append('s_nop 0')
        ops.extend(pend)
        return ops
    sites = []
    for u in range(0, NIT + 1):
        ops = sm_ops(u % 2)
        w0, w1 = 32 * (u - 1) + 18, 32 * u + 14
        npos = w1 - w0 + 1
        cost = [2 if 'v_exp' in o else 1 for o in ops]
        tot = sum(cost); acc = 0
        for o, c in zip(ops, cost):
            pos = w0 + min(npos - 1, int(acc * npos / tot))
            acc += c
            add(pos, lambda o=o: k(o), 3)
        def chk(u=u):
            site = u % 8
            k(f'v_max_f32 v{ET}, v{USUM}, v{USUM+1}')
            k(f'v_cmp_lt_f32 vcc, s29, v{ET}')
            k(f's_cbranch_vccnz .attn_fbs{site}')
            k.label(f'.attn_back{site}')
            k(f'v_add_f32 v{LSUM}, v{LSUM}, v{USUM}')
            k(f'v_add_f32 v{LSUM+1}, v{LSUM+1}, v{USUM+1}')
        add(32 * u + 15, chk, 9)
    for t in range(0, NIT // 2 + 1):
        bp = 32 * (2 * t - 1) - LAG - 1
        def bar(t=t):
            k.wait(vm=('kv', t))
            k('s_barrier')
        add(bp, bar, 0)
        for n in range(8):
            slot = (t + 2) % 4
            isv = n // 4
            lo = (VRING if isv else KRING) + slot * 16384 + (n % 4) * 4096
            add(bp + 1 + 2 * n, lambda lo=lo: k(f's_add_u32 m0, s26, {lo}'), 2)
            add(bp + 2 + 2 * n, lambda t=t, n=n, isv=isv: k.vmem(('kv', t + 2),
                f'buffer_load_dwordx4 v{(DV if isv else DK) + n % 4}, s[{12 if isv else 8}:{15 if isv else 11}], s27 offen lds'), 2)
        add(bp + 18, lambda: k('s_add_u32 s27, s27, 16384'), 2)
    marks = {}
    k.vm = [('kv', 0)] * 8 + [('kv', 1)] * 8
    add(-16, lambda: k('s_nop 15'), 0)
    for pos in range(G0, 32 * NIT):
        if pos % 256 == 0:
            marks[pos // 256] = len(k.lines)
        if pos in mf:
            txt, need = mf[pos]
            k.wait(lg=need)
            k(txt)
        for prio, _, fn in sorted(fills.get(pos, []), key=lambda x: (x[0], x[1])):
            fn()
    marks[NIT // 8] = len(k.lines)
    per0 = k.lines[marks[0]:marks[1]]
    per1 = k.lines[marks[1]:marks[2]]
    per2 = k.lines[marks[2]:marks[3]]
    assert per1 == per2, 'not periodic'
    if per0 != per1:
        diff = [(a, b) for a, b in zip(per0, per1) if a != b]
        print('period0 differs:', len(per0), len(per1), diff[:10])
        raise SystemExit
    k.lines = k.lines[:marks[0]]
    k.label('.attn_loop')
    k.lines += per0
    k('s_sub_u32 s28, s28, 1')
    k('s_cmp_lg_u32 s28, 0')
    k('s_cbranch_scc1 .attn_loop')
    k('s_nop 15')
    k('s_nop 7')
    k('s_waitcnt vmcnt(0) lgkmcnt(0)')
    srd(k, 16, 34, 2048 * 4096 * 2, L.O)
    k('v_add_u32 v9, s37, v6')
    k('v_lshlrev_b32 v9, 13, v9')
    k('v_lshl_add_u32 v9, v5, 4, v9')
    k('s_lshl_b32 s31, s24, 8')
    k('v_add_u32 v9, s31, v9')
    k(f'v_add_u32 v10, {32*8192}, v9')
    for qb in range(2):
        k(f'v_mov_b32 v{FT}, v{LSUM+qb}')
        k('s_nop 1')
        k(f'v_permlane32_swap_b32 v{FT}, v{LSUM+qb}')
        k('s_nop 0')
        k(f'v_add_f32 v{FT}, v{FT}, v{LSUM+qb}')
        k(f'v_rcp_f32 v{FT+1+qb}, v{FT}')
    k('s_nop 0')
    n = 0
    for qb in range(2):
        for db in range(4):
            t = SB + (n % 4) * 24; n += 1
            for r in range(16):
                k(f'v_accvgpr_read_b32 v{t+r}, a{Oacc(db,qb)+r}')
            for r in range(16):
                k(f'v_mul_f32 v{t+r}, v{t+r}, v{FT+1+qb}')
            for p in range(8):
                k(f'v_cvt_pk_bf16_f32 v{t+16+p}, v{t+2*p}, v{t+2*p+1}')
            k('s_nop 1')
            for g0 in (0, 2):
                x, y = t + 16 + 2 * g0, t + 16 + 2 * g0 + 2
                k(f'v_permlane32_swap_b32 v{x}, v{y}')
                k(f'v_permlane32_swap_b32 v{x+1}, v{y+1}')
            for g0 in (0, 2):
                k(f'buffer_store_dwordx4 {vr(t+16+2*g0,4)}, v{9+qb}, s[16:19], 0 offen offset:{db*64+g0*16}')
    k.label('.attn_end')
    k('s_endpgm')
    for site in range(8):
        k.label(f'.attn_fbs{site}')
        k(f's_call_b64 s[40:41], .attn_fb{site%2}')
        k(f's_branch .attn_back{site}')
    for par in range(2):
        k.label(f'.attn_fb{par}')
        k('s_nop 15')
        k('s_nop 15')
        for qb in range(2):
            s0 = S(par, qb)
            k(f'v_max3_f32 v{FT}, v{s0}, v{s0+1}, v{s0+2}')
            for j in range(3, 15, 2):
                k(f'v_max3_f32 v{FT}, v{FT}, v{s0+j}, v{s0+j+1}')
            k(f'v_max_f32 v{FT}, v{FT}, v{s0+15}')
            k(f'v_mov_b32 v{FT+1}, v{FT}')
            k('s_nop 1')
            k(f'v_permlane32_swap_b32 v{FT}, v{FT+1}')
            k('s_nop 0')
            k(f'v_max_f32 v{FT}, v{FT}, v{FT+1}')
            k(f'v_max_f32 v{FT}, s30, v{FT}')
            k(f'v_max_f32 v{FT+1}, 0, v{FT}')
            k(f'v_sub_f32 v{FT+1}, 0, v{FT+1}')
            k(f'v_exp_f32 v{FT+1}, v{FT+1}')
            k(f'v_sub_f32 v{NM+16*qb}, v{NM+16*qb}, v{FT}')
            for r in range(1, 16):
                k(f'v_mov_b32 v{NM+16*qb+r}, v{NM+16*qb}')
            for r in range(16):
                k(f'v_sub_f32 v{s0+r}, v{s0+r}, v{FT}')
                k(f'v_sub_f32 v{S(1-par,qb,r)}, v{S(1-par,qb,r)}, v{FT}')
            k(f'v_mul_f32 v{LSUM+qb}, v{LSUM+qb}, v{FT+1}')
            for db in range(4):
                for r0 in range(0, 16, 8):
                    for r in range(8):
                        k(f'v_accvgpr_read_b32 v{FT+2+r}, a{Oacc(db,qb)+r0+r}')
                    for r in range(8):
                        k(f'v_mul_f32 v{FT+2+r}, v{FT+2+r}, v{FT+1}')
                    for r in range(8):
                        k(f'v_accvgpr_write_b32 a{Oacc(db,qb)+r0+r}, v{FT+2+r}')
        for o in sm_ops(par):
            k(o)
        k(f's_mov_b32 s29, {f32(65536.0)}')
        k('s_mov_b32 s30, 0')
        k('s_nop 3')
        k('s_setpc_b64 s[40:41]')
    return k.text(512, 48, 256)
```

```python
class K:
    def __init__(self, name):
        self.name = name
        self.lines = []
        self.lg = []
        self.vm = []
        self.nlabel = 0

    def __call__(self, s):
        for l in s.strip('\n').split('\n'):
            l = l.strip()
            if l:
                self.lines.append('    ' + l)

    def label(self, l):
        self.lines.append(l + ':')

    def newlabel(self, base='L'):
        self.nlabel += 1
        return f'.{self.name}_{base}{self.nlabel}'

    def lds(self, tag, s):
        self(s)
        self.lg.append(tag)

    def vmem(self, tag, s):
        self(s)
        self.vm.append(tag)

    def _wait(self, q, tags, mx, cname):
        if not isinstance(tags, (list, set)):
            tags = [tags]
        pos = -1
        for i, t in enumerate(q):
            if t in tags:
                pos = i
        if pos < 0:
            return None
        n = len(q) - 1 - pos
        n = min(n, mx)
        del q[:len(q) - n]
        return f'{cname}({n})'

    def wait(self, lg=None, vm=None):
        parts = []
        if vm is not None:
            w = self._wait(self.vm, vm, 63, 'vmcnt')
            if w: parts.append(w)
        if lg is not None:
            w = self._wait(self.lg, lg, 15, 'lgkmcnt')
            if w: parts.append(w)
        if parts:
            self('s_waitcnt ' + ' '.join(parts))

    def wait_all(self):
        self('s_waitcnt vmcnt(0) lgkmcnt(0)')
        self.vm = []
        self.lg = []

    def text(self, vgpr, sgpr=102, accum=None):
        if accum is None:
            accum = (vgpr + 3) // 4 * 4
        hdr = f'''.text
.globl {self.name}
.p2align 8
.type {self.name},@function
{self.name}:
'''
        kd = f'''
.section .rodata,"a"
.p2align 6
.amdhsa_kernel {self.name}
  .amdhsa_next_free_vgpr {vgpr}
  .amdhsa_next_free_sgpr {sgpr}
  .amdhsa_accum_offset {accum}
  .amdhsa_group_segment_fixed_size 0
  .amdhsa_kernarg_size 112
  .amdhsa_user_sgpr_count 2
  .amdhsa_user_sgpr_kernarg_segment_ptr 1
  .amdhsa_system_sgpr_workgroup_id_x 1
.end_amdhsa_kernel
'''
        return hdr + '\n'.join(self.lines) + '\n' + kd


A_X, A_K, A_V, A_WQ, A_WO, B_X, B_WG, B_WU, B_WD, C_, WMOD, OUT, DBG, WS = [i * 8 for i in range(14)]


def srd(k, d, base, size, off=None):
    if off is None:
        k(f's_mov_b32 s{d}, s{base}')
        k(f's_mov_b32 s{d+1}, s{base+1}')
    else:
        k(f's_add_u32 s{d}, s{base}, {off}')
        k(f's_addc_u32 s{d+1}, s{base+1}, 0')
    k(f's_mov_b32 s{d+2}, {size}')
    k(f's_mov_b32 s{d+3}, 0x00020000')
```

```python
from fw import *
import layout as L

STAGE = 34816
NSLOT = 4
LDS = STAGE * NSLOT
WOFF = 16384
WSUB = 9216

def vr(b, n): return f'v[{b}:{b+n-1}]'
def ar(b, n): return f'a[{b}:{b+n-1}]'

def fsw(q):
    return (-q) & 3


def k_gemm(mode):
    name = {'ffn1': 'ffn1_kernel', 'wo': 'wo_kernel', 'down': 'down_kernel'}[mode]
    ffn = mode == 'ffn1'
    k = K(name)
    end = f'.{name}_end'
    if ffn:
        astride, wstride, nst = 1152, 9216, 18
        MB, NB, KS = 4, 18, 1
        a_adv, w_adv = 64, 32 * 9216
    else:
        Ktot = 4096 if mode == 'wo' else 4608
        astride, wstride, nst = Ktot * 2, 1152, Ktot // 4 // 64
        MB, NB, KS = 2, 9, 2
        a_adv, w_adv = 128, 64 * 1152
    NM = MB * NB * KS
    DA, DW, RA, RW = 16, 20, 26, 30
    AF = 36
    WF = 68
    NWP = 10
    ACCV = 112
    EP = 160
    def acc(i):
        return ar(4 * i, 4) if i < 64 else vr(ACCV + 4 * (i - 64), 4)

    k('s_cmp_ge_u32 s2, 256')
    k(f's_cbranch_scc1 {end}')
    k(f's_load_dwordx2 s[4:5], s[0:1], {WS}')
    if ffn:
        k(f's_load_dwordx4 s[36:39], s[0:1], {B_WG}')
    else:
        k(f's_load_dwordx2 s[36:37], s[0:1], {A_WO if mode == "wo" else B_WD}')
    k('v_lshrrev_b32 v1, 6, v0')
    k('v_and_b32 v2, 63, v0')
    k('s_nop 0')
    k('v_readfirstlane_b32 s3, v1')
    if ffn:
        k('s_and_b32 s24, s2, 7')
        k('s_lshl_b32 s24, s24, 2')
        k('s_bfe_u32 s25, s2, 0x20003')
        k('s_add_u32 s24, s24, s25')
        k('s_lshr_b32 s25, s2, 5')
        k('s_lshl_b32 s25, s25, 8')
        k('s_mov_b32 s23, 0')
    else:
        k('s_bfe_u32 s23, s2, 0x20001')
        k('s_and_b32 s25, s2, 1')
        k('s_lshl_b32 s25, s25, 3')
        k('s_bfe_u32 s24, s2, 0x30003')
        k('s_add_u32 s25, s25, s24')
        k('s_lshl_b32 s25, s25, 7')
        k('s_lshr_b32 s24, s2, 6')
    k('s_lshl_b32 s26, s3, 10')
    k('s_waitcnt lgkmcnt(0)')
    asz = {'ffn1': 2048 * 576 * 2, 'wo': 2048 * 4096 * 2, 'down': 2048 * 4608 * 2}[mode]
    aoff = {'ffn1': L.H2, 'wo': L.O, 'down': L.HM}[mode]
    wsz = {'ffn1': 576 * 4608 * 2, 'wo': 4096 * 576 * 2, 'down': 4608 * 576 * 2}[mode]
    srd(k, 8, 4, asz, aoff)
    for j in range(5):
        d = 44 + 4 * j
        if ffn:
            k(f's_add_u32 s30, s3, {4*j}')
            k('s_cmp_ge_u32 s30, 9')
            k(f's_cselect_b32 s{d}, s38, s36')
            k(f's_cselect_b32 s{d+1}, s39, s37')
        else:
            k(f's_mov_b32 s{d}, s36')
            k(f's_mov_b32 s{d+1}, s37')
        k(f's_mov_b32 s{d+2}, {wsz}')
        k(f's_mov_b32 s{d+3}, 0x00020000')
    k('v_and_b32 v3, 15, v2')
    k('v_lshrrev_b32 v4, 4, v2')
    k('v_lshrrev_b32 v5, 2, v3')
    k('v_and_b32 v6, 3, v2')
    k('v_lshrrev_b32 v7, 2, v2')
    k('v_sub_u32 v8, 0, v4')
    k('v_and_b32 v8, 3, v8')
    k('v_xor_b32 v8, v6, v8')
    k('v_lshlrev_b32 v8, 4, v8')
    k(f's_mov_b32 s31, {astride}')
    if not ffn:
        k(f's_mul_i32 s29, s23, {nst * 128}')
    for j in range(4):
        k(f's_add_u32 s30, s3, {4*j}')
        if ffn:
            k('s_lshl_b32 s30, s30, 4')
            k('s_add_u32 s30, s30, s25')
            k('v_add_u32 v9, s30, v7')
            k('v_mul_lo_u32 v9, v9, s31')
            k(f'v_add_u32 v{DA+j}, v9, v8')
        else:
            k('s_and_b32 s28, s30, 7')
            k('s_lshl_b32 s28, s28, 4')
            k('s_add_u32 s28, s28, s25')
            k('v_add_u32 v9, s28, v7')
            k('v_mul_lo_u32 v9, v9, s31')
            k('s_lshr_b32 s28, s30, 3')
            k('s_lshl_b32 s28, s28, 6')
            k('s_add_u32 s28, s28, s29')
            k('v_add_u32 v9, s28, v9')
            k(f'v_add_u32 v{DA+j}, v9, v8')
    k(f's_mov_b32 s31, {wstride}')
    k('s_mul_i32 s29, s24, 288')
    if not ffn:
        k(f's_mul_i32 s28, s23, {nst * 64 * 1152}')
        k('s_add_u32 s29, s29, s28')
    for j in range(5):
        k(f's_add_u32 s30, s3, {4*j}')
        k('s_min_u32 s30, s30, 17')
        k('s_cmp_ge_u32 s30, 9')
        k('s_cselect_b32 s28, 9, 0')
        k('s_sub_u32 s27, s30, s28')
        k('s_lshl_b32 s27, s27, 6')
        k('v_add_u32 v9, s27, v2')
        k('s_movk_i32 s27, 3641')
        k('v_mul_lo_u32 v10, v9, s27')
        k('v_lshrrev_b32 v10, 16, v10')
        k('v_mul_u32_u24 v11, 18, v10')
        k('v_sub_u32 v11, v9, v11')
        k('v_and_b32 v12, 0x13, v10')
        k('v_and_b32 v13, 4, v10')
        k('v_lshlrev_b32 v13, 1, v13')
        k('v_or_b32 v12, v12, v13')
        k('v_and_b32 v13, 8, v10')
        k('v_lshrrev_b32 v13, 1, v13')
        k('v_or_b32 v12, v12, v13')
        if not ffn:
            k('s_cselect_b32 s28, 32, 0')
        k('v_mul_lo_u32 v12, v12, s31')
        k('v_lshl_add_u32 v12, v11, 4, v12')
        k(f'v_add_u32 v{DW+j}, s29, v12')
        if not ffn:
            k('s_cmp_ge_u32 s30, 9')
            k(f's_cselect_b32 s28, {32*1152}, 0')
            k(f'v_add_u32 v{DW+j}, s28, v{DW+j}')
        k(f's_lshl_b32 s{70+j}, s30, 10')
        k(f's_add_u32 s{70+j}, s{70+j}, {WOFF}')
    k('v_sub_u32 v8, 0, v5')
    k('v_and_b32 v8, 3, v8')
    k('v_xor_b32 v8, v4, v8')
    k('v_lshlrev_b32 v8, 4, v8')
    k('v_lshl_add_u32 v8, v3, 6, v8')
    k(f's_mul_i32 s30, s3, {MB*16*64}')
    k('v_add_u32 v8, s30, v8')
    k('v_lshrrev_b32 v9, 1, v4')
    k('v_lshlrev_b32 v9, 4, v9')
    k('v_and_b32 v10, 1, v4')
    k('v_lshl_add_u32 v9, v10, 2, v9')
    k('v_add_u32 v9, v9, v5')
    k('v_mul_u32_u24 v9, 288, v9')
    k('v_lshl_add_u32 v9, v6, 3, v9')
    for s in range(NSLOT):
        k(f'v_add_u32 v{RA+s}, {s*STAGE}, v8')
        k(f'v_add_u32 v{RW+s}, {s*STAGE+WOFF}, v9')
    k('s_mov_b32 s27, 0')
    k('s_mov_b32 s28, 0')

    LAGM = 10 if ffn else 8
    fills = {}
    def add(pos, fn, prio=5):
        fills.setdefault(pos, []).append((prio, len(fills.get(pos, [])), fn))
    mf = {}
    wcount = [0]
    def dma_stage(t, p0, step):
        base = (t % NSLOT) * STAGE
        p = p0
        for j in range(4):
            add(p, lambda j=j: k(f's_add_u32 m0, s26, {base + j*4096}'), 2)
            add(p + step, lambda j=j: k.vmem(('st', t), f'buffer_load_dwordx4 v{DA+j}, s[8:11], s27 offen lds'), 2)
            p += 2 * step
        for j in range(5):
            add(p, lambda j=j: k(f's_add_u32 m0, s{70+j}, {base}'), 2)
            add(p + step, lambda j=j: k.vmem(('st', t), f'buffer_load_dwordx4 v{DW+j}, s[{44+4*j}:{47+4*j}], s28 offen lds'), 2)
            p += 2 * step
        add(p, lambda: k(f's_add_u32 s27, s27, {a_adv}'), 2)
        add(p, lambda: k(f's_add_u32 s28, s28, {w_adv}'), 2)
    P0 = -1000
    for t in range(3):
        dma_stage(t, P0 + t * 100, 1)
    for t in range(nst):
        slot = t % NSLOT
        b0 = t * NM
        bp = b0 - LAGM - 1
        def bar(t=t):
            k.wait(vm=('st', t))
            k('s_barrier')
        add(bp, bar, 0)
        if t >= 1 and t + 2 < nst:
            dma_stage(t + 2, bp + 1, 1)
        aset = (t % 2) * 16
        for ks in range(KS):
            for mb in range(MB):
                i = ks * MB + mb
                r = AF + aset + 4 * i
                first_use = b0 + ks * MB * NB
                pos = max(bp + 1, first_use - LAGM) if ks == 0 else first_use - LAGM
                add(pos, lambda r=r, ks=ks, mb=mb, t=t, slot=slot: k.lds(('a', t, ks, mb),
                    f'ds_read_b128 {vr(r,4)}, v{RA+slot} offset:{ks*8192 + mb*1024}'), 1)
        for ks in range(KS):
            for nb in range(NB):
                wb = WF + (wcount[0] % NWP) * 4; wcount[0] += 1
                sub = ks if not ffn else nb // 9
                nbb = nb % 9
                use = b0 + (ks * NB + nb) * MB
                off = sub * WSUB + nbb * 32
                pos = max(bp + 1, use - LAGM)
                add(pos, lambda wb=wb, off=off, t=t, ks=ks, nb=nb, slot=slot: k.lds(('w', t, ks, nb),
                    f'ds_read_b64_tr_b16 {vr(wb,2)}, v{RW+slot} offset:{off}'), 1)
                add(pos + 1, lambda wb=wb, off=off, t=t, ks=ks, nb=nb, slot=slot: k.lds(('w', t, ks, nb),
                    f'ds_read_b64_tr_b16 {vr(wb+2,2)}, v{RW+slot} offset:{off+2304}'), 1)
                for mb in range(MB):
                    a = acc(nb * MB + mb)
                    c = '0' if (t == 0 and ks == 0) else a
                    mf[use + mb] = (f'v_mfma_f32_16x16x32_bf16 {a}, {vr(wb,4)}, {vr(AF+aset+4*(ks*MB+mb),4)}, {c}',
                                    [('w', t, ks, nb), ('a', t, ks, mb)])
    for pos in range(P0, nst * NM):
        if pos in mf:
            txt, need = mf[pos]
            k.wait(lg=need)
            k(txt)
        elif pos in fills:
            k('s_nop 0')
        for prio, _, fn in sorted(fills.get(pos, []), key=lambda x: (x[0], x[1])):
            fn()
    k('s_nop 15')
    k('s_waitcnt vmcnt(0) lgkmcnt(0)')
    if ffn:
        srd(k, 12, 4, 2048 * 4608 * 2, L.HM)
        k('s_lshl_b32 s30, s3, 6')
        k('s_add_u32 s30, s30, s25')
        k('v_add_u32 v8, s30, v3')
        k('s_movk_i32 s31, 9216')
        k('v_mul_lo_u32 v8, v8, s31')
        k('s_mul_i32 s29, s24, 288')
        k('v_add_u32 v8, s29, v8')
        k('v_and_b32 v9, 1, v4')
        k('v_lshrrev_b32 v10, 1, v4')
        k('v_lshlrev_b32 v9, 5, v9')
        k('v_lshl_add_u32 v9, v10, 4, v9')
        k('v_add_u32 v9, v8, v9')
        k('v_lshl_add_u32 v10, v4, 3, v8')
        n = 0
        for mb in range(MB):
            k(f's_mov_b32 s30, {mb*16*9216}')
            for nb0 in range(0, 9, 2):
                t = EP + (n % 4) * 20; n += 1
                blocks = [nb0] if nb0 == 8 else [nb0, nb0 + 1]
                for bi, nb in enumerate(blocks):
                    g, u = nb * MB + mb, (nb + 9) * MB + mb
                    x = t + 4 + 8 * bi
                    for r in range(4):
                        k(f'v_accvgpr_read_b32 v{x+r}, a{4*g+r}')
                        if u < 64:
                            k(f'v_accvgpr_read_b32 v{x+4+r}, a{4*u+r}')
                        else:
                            k(f'v_mov_b32 v{x+4+r}, v{ACCV+4*(u-64)+r}')
                    for r in range(4):
                        k(f'v_max_f32 v{x+r}, 0, v{x+r}')
                    for h in range(4):
                        k(f'v_cvt_pk_bf16_f32 v{x+2*h}, v{x+2*h}, v{x+2*h+1}')
                    for h in range(4):
                        k(f'v_and_b32 v{x+2*h+1}, 0xffff0000, v{x+2*h}')
                        k(f'v_lshlrev_b32 v{x+2*h}, 16, v{x+2*h}')
                    for r in range(4):
                        k(f'v_mul_f32 v{x+r}, v{x+r}, v{x+4+r}')
                    k(f'v_cvt_pk_bf16_f32 v{t+2*bi}, v{x}, v{x+1}')
                    k(f'v_cvt_pk_bf16_f32 v{t+2*bi+1}, v{x+2}, v{x+3}')
                if len(blocks) == 2:
                    k('s_nop 1')
                    k(f'v_permlane16_swap_b32 v{t}, v{t+2}')
                    k(f'v_permlane16_swap_b32 v{t+1}, v{t+3}')
                    k(f'buffer_store_dwordx4 {vr(t,4)}, v9, s[12:15], s30 offen offset:{nb0*32}')
                else:
                    k(f'buffer_store_dwordx2 {vr(t,2)}, v10, s[12:15], s30 offen offset:{nb0*32}')
    else:
        srd(k, 12, 4, 4 * 2048 * 576 * 4, L.P1 if mode == 'wo' else L.P2)
        k('s_lshl_b32 s30, s3, 5')
        k('s_add_u32 s30, s30, s25')
        k('s_lshl_b32 s31, s23, 11')
        k('s_add_u32 s30, s30, s31')
        k('v_add_u32 v8, s30, v3')
        k('s_movk_i32 s31, 2304')
        k('v_mul_lo_u32 v8, v8, s31')
        k('s_mul_i32 s29, s24, 576')
        k('v_add_u32 v8, s29, v8')
        k('v_lshl_add_u32 v8, v4, 4, v8')
        for mb in range(MB):
            k(f's_mov_b32 s30, {mb*16*2304}')
            for nb in range(NB):
                k(f'buffer_store_dwordx4 {acc(nb*MB+mb)}, v8, s[12:15], s30 offen offset:{nb*64}')
    k.label(end)
    k('s_endpgm')
    return k.text(512, 80, 256)
```

```python
from fw import *
import layout as L
import struct

LOG2E = 0x3fb8aa3b


def k_mod():
    k = K('mod_kernel')
    k('s_cmp_ge_u32 s2, 27')
    k('s_cbranch_scc1 .mod_end')
    k(f's_load_dwordx2 s[4:5], s[0:1], {C_}')
    k(f's_load_dwordx2 s[6:7], s[0:1], {WMOD}')
    k(f's_load_dwordx2 s[20:21], s[0:1], {WS}')
    k('v_lshrrev_b32 v1, 6, v0')
    k('v_and_b32 v2, 63, v0')
    k('s_nop 0')
    k('v_readfirstlane_b32 s3, v1')
    k('s_waitcnt lgkmcnt(0)')
    srd(k, 8, 4, 1152)
    srd(k, 12, 6, 576 * 3456 * 2)
    srd(k, 16, 20, 3456 * 4, L.MOD)
    k('s_mul_i32 s22, s3, 72')
    k('v_lshlrev_b32 v3, 1, v2')
    k('buffer_load_ushort v4, v3, s[8:11], s22 offen')
    k('s_mul_i32 s23, s3, 36*6912')
    k('s_lshl_b32 s24, s2, 8')
    k('s_add_u32 s23, s23, s24')
    k('v_lshlrev_b32 v5, 2, v2')
    for i in range(36):
        if i % 1 == 0:
            k(f's_add_u32 s25, s23, {i*6912}')
        k(f'buffer_load_dword v{16+i}, v5, s[12:15], s25 offen')
    k('s_waitcnt vmcnt(36)')
    k('v_lshlrev_b32 v4, 16, v4')
    k(f's_mov_b32 s26, {LOG2E}')
    k('v_mul_f32 v6, s26, v4')
    k('v_sub_f32 v6, 0, v6')
    k('v_exp_f32 v6, v6')
    k('s_nop 0')
    k('v_add_f32 v6, 1.0, v6')
    k('v_rcp_f32 v6, v6')
    k('s_nop 0')
    k('v_mul_f32 v6, v4, v6')
    k('v_cvt_pk_bf16_f32 v6, v6, v6')
    k('v_lshlrev_b32 v6, 16, v6')
    k('v_mov_b32 v8, 0')
    k('v_mov_b32 v9, 0')
    k('s_waitcnt vmcnt(0)')
    for i in range(36):
        k(f'v_readlane_b32 s27, v6, {i}')
        k(f'v_lshlrev_b32 v10, 16, v{16+i}')
        k(f'v_and_b32 v11, 0xffff0000, v{16+i}')
        k(f'v_fmac_f32 v8, s27, v10')
        k(f'v_fmac_f32 v9, s27, v11')
    k('v_lshlrev_b32 v12, 3, v0')
    k('ds_write_b64 v12, v[8:9]')
    k('s_waitcnt lgkmcnt(0)')
    k('s_barrier')
    k('s_cmp_lg_u32 s3, 0')
    k('s_cbranch_scc1 .mod_end')
    for i in range(16):
        k(f'ds_read_b64 v[{16+2*i}:{17+2*i}], v12 offset:{i*512}')
    k('s_waitcnt lgkmcnt(0)')
    for i in range(1, 16):
        k(f'v_add_f32 v16, v16, v{16+2*i}')
        k(f'v_add_f32 v17, v17, v{17+2*i}')
    k('v_cvt_pk_bf16_f32 v18, v16, v17')
    k('v_lshlrev_b32 v16, 16, v18')
    k('v_and_b32 v17, 0xffff0000, v18')
    k('s_lshl_b32 s24, s2, 9')
    k('buffer_store_dwordx2 v[16:17], v12, s[16:19], s24 offen')
    k.label('.mod_end')
    k('s_endpgm')
    return k.text(64, 32)


def half_reduce(k, v, tmp):
    for m in (1, 2, 4, 8, 16):
        k(f'ds_swizzle_b32 v{tmp}, v{v} offset:{(m << 10) | 0x1f}')
        k('s_waitcnt lgkmcnt(0)')
        k(f'v_add_f32 v{v}, v{v}, v{tmp}')


def rnd2(k, a, b, t):
    k(f'v_cvt_pk_bf16_f32 v{t}, v{a}, v{b}')
    k(f'v_lshlrev_b32 v{a}, 16, v{t}')
    k(f'v_and_b32 v{b}, 0xffff0000, v{t}')


def k_row(mode):
    name = {'ln1': 'ln1_kernel', 'ln2': 'ln2_kernel', 'fin': 'fin_kernel'}[mode]
    k = K(name)
    end = f'.{name}_end'
    k('s_cmp_ge_u32 s2, 256')
    k(f's_cbranch_scc1 {end}')
    k(f's_load_dwordx2 s[4:5], s[0:1], {A_X}')
    k(f's_load_dwordx2 s[6:7], s[0:1], {WS}')
    k(f's_load_dwordx2 s[28:29], s[0:1], {OUT}')
    k('v_lshrrev_b32 v1, 5, v0')
    k('s_lshl_b32 s3, s2, 3')
    k('v_add_u32 v1, s3, v1')
    k('v_and_b32 v2, 31, v0')
    k('s_movk_i32 s30, 1152')
    k('v_mul_lo_u32 v3, v1, s30')
    k('v_lshl_add_u32 v3, v2, 2, v3')
    k('v_lshlrev_b32 v4, 3, v2')
    k('s_movk_i32 s30, 2304')
    k('v_mul_lo_u32 v5, v1, s30')
    k('v_add_u32 v5, v5, v4')
    k('s_waitcnt lgkmcnt(0)')
    XSZ = 2048 * 576 * 2
    srd(k, 12, 6, 3456 * 4, L.MOD)
    if mode == 'ln1':
        srd(k, 8, 4, XSZ)
        srd(k, 16, 6, XSZ, L.H1)
    elif mode == 'ln2':
        srd(k, 8, 4, XSZ)
        srd(k, 16, 6, XSZ, L.H2)
        srd(k, 20, 6, XSZ, L.X1)
        srd(k, 24, 6, XSZ * 2 * 4, L.P1)
    else:
        srd(k, 8, 6, XSZ, L.X1)
        srd(k, 16, 28, XSZ)
        srd(k, 24, 6, XSZ * 2 * 4, L.P2)
    X, SH, SC, GA, PP = 20, 40, 60, 80, 100
    for i in range(9):
        k(f'buffer_load_dword v{8+i}, v3, s[8:11], 0 offen offset:{128*i}')
    sh_off, sc_off, g_off = {'ln1': (0, 576, None), 'ln2': (1728, 2304, 1152), 'fin': (None, None, 2880)}[mode]
    if g_off is not None:
        for s in range(4):
            k(f's_mov_b32 s31, {s * 2048 * 576 * 4}')
            for i in range(9):
                k(f'buffer_load_dwordx2 v[{PP+18*s+2*i}:{PP+18*s+2*i+1}], v5, s[24:27], s31 offen offset:{256*i}')
        k(f's_movk_i32 s31, {g_off*4}')
        for i in range(9):
            k(f'buffer_load_dwordx2 v[{GA+2*i}:{GA+2*i+1}], v4, s[12:15], s31 offen offset:{256*i}')
    if sh_off is not None:
        k(f's_movk_i32 s31, {sh_off*4}')
        for i in range(9):
            k(f'buffer_load_dwordx2 v[{SH+2*i}:{SH+2*i+1}], v4, s[12:15], s31 offen offset:{256*i}')
        k(f's_movk_i32 s31, {sc_off*4}')
        for i in range(9):
            k(f'buffer_load_dwordx2 v[{SC+2*i}:{SC+2*i+1}], v4, s[12:15], s31 offen offset:{256*i}')
    k('s_waitcnt vmcnt(0)')
    for i in range(9):
        k(f'v_lshlrev_b32 v{X+2*i}, 16, v{8+i}')
        k(f'v_and_b32 v{X+2*i+1}, 0xffff0000, v{8+i}')
    if g_off is not None:
        for j in range(18):
            k(f'v_add_f32 v{PP+j}, v{PP+j}, v{PP+18+j}')
            k(f'v_add_f32 v{PP+36+j}, v{PP+36+j}, v{PP+54+j}')
            k(f'v_add_f32 v{PP+j}, v{PP+j}, v{PP+36+j}')
        for i in range(9):
            a, b = PP + 2 * i, PP + 2 * i + 1
            rnd2(k, a, b, 6)
            k(f'v_mul_f32 v{a}, v{GA+2*i}, v{a}')
            k(f'v_mul_f32 v{b}, v{GA+2*i+1}, v{b}')
            rnd2(k, a, b, 6)
            k(f'v_add_f32 v{X+2*i}, v{X+2*i}, v{a}')
            k(f'v_add_f32 v{X+2*i+1}, v{X+2*i+1}, v{b}')
            k(f'v_cvt_pk_bf16_f32 v{8+i}, v{X+2*i}, v{X+2*i+1}')
            k(f'v_lshlrev_b32 v{X+2*i}, 16, v{8+i}')
            k(f'v_and_b32 v{X+2*i+1}, 0xffff0000, v{8+i}')
        dst = 's[20:23]' if mode == 'ln2' else 's[16:19]'
        for i in range(9):
            k(f'buffer_store_dword v{8+i}, v3, {dst}, 0 offen offset:{128*i}')
    if mode != 'fin':
        k(f'v_add_f32 v6, v{X}, v{X+1}')
        for j in range(2, 18):
            k(f'v_add_f32 v6, v6, v{X+j}')
        half_reduce(k, 6, 7)
        k('s_mov_b32 s30, 0x%08x' % struct.unpack('<I', struct.pack('<f', 1.0/576))[0])
        k('v_mul_f32 v6, s30, v6')
        k(f'v_sub_f32 v7, v{X}, v6')
        k('v_mul_f32 v18, v7, v7')
        for j in range(1, 18):
            k(f'v_sub_f32 v7, v{X+j}, v6')
            k('v_fmac_f32 v18, v7, v7')
        half_reduce(k, 18, 7)
        k('v_mul_f32 v18, s30, v18')
        rnd2(k, 6, 18, 7)
        k('s_mov_b32 s30, 0x3727c5ac')
        k('v_add_f32 v18, s30, v18')
        k('v_cvt_pk_bf16_f32 v7, v18, v18')
        k('v_lshlrev_b32 v18, 16, v7')
        k('v_sqrt_f32 v18, v18')
        k('s_nop 0')
        k('v_cvt_pk_bf16_f32 v7, v18, v18')
        k('v_lshlrev_b32 v18, 16, v7')
        k('v_rcp_f32 v18, v18')
        k('s_nop 0')
        for i in range(9):
            a, b = X + 2 * i, X + 2 * i + 1
            k(f'v_sub_f32 v{a}, v{a}, v6')
            k(f'v_sub_f32 v{b}, v{b}, v6')
            rnd2(k, a, b, 7)
            k(f'v_mul_f32 v{a}, v{a}, v18')
            k(f'v_mul_f32 v{b}, v{b}, v18')
            rnd2(k, a, b, 7)
            k(f'v_add_f32 v{SC+2*i}, 1.0, v{SC+2*i}')
            k(f'v_add_f32 v{SC+2*i+1}, 1.0, v{SC+2*i+1}')
            rnd2(k, SC + 2 * i, SC + 2 * i + 1, 7)
            k(f'v_mul_f32 v{a}, v{a}, v{SC+2*i}')
            k(f'v_mul_f32 v{b}, v{b}, v{SC+2*i+1}')
            rnd2(k, a, b, 7)
            k(f'v_add_f32 v{a}, v{a}, v{SH+2*i}')
            k(f'v_add_f32 v{b}, v{b}, v{SH+2*i+1}')
            k(f'v_cvt_pk_bf16_f32 v{PP+i}, v{a}, v{b}')
        for i in range(9):
            k(f'buffer_store_dword v{PP+i}, v3, s[16:19], 0 offen offset:{128*i}')
    k.label(end)
    k('s_endpgm')
    return k.text(176, 40)
```

```python
import sys, os
sys.path.insert(0, os.path.dirname(os.path.abspath(__file__)))
import small, attn
try:
    import gemm
except ImportError:
    gemm = None
NAME = 'adaLN_cond__mha_block_cached__glu_gated_reglu__prompt'
ref = open(f'cdna_kernels/{NAME}.s.ref').read().split('\n')
hdr = [l for l in ref if l.startswith(';') and '@launch' not in l and 'Override launch' not in l and 'grid=ceil' not in l]
launch = [
    ('mod_kernel', 27, 1024, 8192),
    ('ln1_kernel', 256, 256, 0),
    ('attn_kernel', 256, 256, 163840),
]
body = [small.k_mod(), small.k_row('ln1'), attn.k_attn()]
if gemm:
    launch += [
        ('wo_kernel', 256, 256, gemm.LDS),
        ('ln2_kernel', 256, 256, 0),
        ('ffn1_kernel', 256, 256, gemm.LDS),
        ('down_kernel', 256, 256, gemm.LDS),
        ('fin_kernel', 256, 256, 0),
    ]
    body += [gemm.k_gemm('wo'), small.k_row('ln2'), gemm.k_gemm('ffn1'), gemm.k_gemm('down'), small.k_row('fin')]
out = '\n'.join(hdr) + '\n'
for n, g, b, l in launch:
    out += f'; @launch kernel={n} grid=({g},1,1) block=({b},1,1) lds={l}\n'
out += '.amdgcn_target "amdgcn-amd-amdhsa--gfx950"\n'
out += '\n'.join(body)
dst = sys.argv[1] if len(sys.argv) > 1 else f'cdna_kernels/{NAME}.s'
open(dst, 'w').write(out)
print('wrote', dst, len(out), 'bytes', out.count('\n'), 'lines')
```

```python
from fw import *
import layout as L
import struct, math

def f32(x):
    return '0x%08x' % struct.unpack('<I', struct.pack('<f', x))[0]

AK = 16
AV = 24
DK = 28
DV = 32
LSUM = 36
USUM = 38
ET = 40
FT = 48
SB = 64
NM = 128
PB = 160
FP = 192
PR = 224
NPOOL = 8
LAG = 7

KRING, VRING, XTRA = 0, 65536, 131072


def S(par, qb, r=0): return SB + par * 32 + qb * 16 + r
def P(par, qb, r=0): return PB + par * 16 + qb * 8 + r
def Oacc(db, qb): return (db * 2 + qb) * 16
def Qreg(qb, s): return 128 + (qb * 8 + s) * 4
def vr(b, n): return f'v[{b}:{b+n-1}]'
def ar(b, n): return f'a[{b}:{b+n-1}]'


import os
DIAG = os.environ.get('DIAG')
AEXP = os.environ.get('AEXP', '')
def stamp(k, i):
    if DIAG:
        k(f's_memtime s[{50+2*i}:{51+2*i}]')
        if i == 0: k('s_memrealtime s[74:75]')
        k('s_waitcnt lgkmcnt(0)')

def stamp_out(k, last, endlabel, wg=77):
    if DIAG:
        k('s_waitcnt vmcnt(0)')
        stamp(k, last)
        k('s_memrealtime s[76:77]')
        k(f's_load_dwordx2 s[40:41], s[0:1], {DBG}')
        k('s_waitcnt lgkmcnt(0)')
        srd(k, 40, 40, 256)
        lab = k.newlabel('st')
        k(f's_cmp_lg_u32 s2, {wg}')
        k(f's_cbranch_scc1 {lab}')
        k('s_cmp_lg_u32 s3, 0')
        k(f's_cbranch_scc1 {lab}')
        k('v_mov_b32 v1, 0')
        for i in range(28):
            k(f'v_mov_b32 v2, s{50+i}')
            k(f'buffer_store_dword v2, v1, s[40:43], 0 offen offset:{128+4*i}')
        k.label(lab)

def k_attn():
    k = K('attn_kernel')
    k('s_cmp_ge_u32 s2, 256')
    k('s_cbranch_scc1 .attn_end')
    stamp(k, 0)
    k(f's_load_dwordx4 s[4:7], s[0:1], {A_K}')
    k(f's_load_dwordx2 s[32:33], s[0:1], {A_WQ}')
    k(f's_load_dwordx2 s[34:35], s[0:1], {WS}')
    k('v_lshrrev_b32 v1, 6, v0')
    k('v_and_b32 v2, 63, v0')
    k('s_nop 0')
    k('v_readfirstlane_b32 s3, v1')
    k('s_and_b32 s24, s2, 7')
    k('s_lshl_b32 s24, s24, 2')
    k('s_bfe_u32 s25, s2, 0x20003')
    k('s_add_u32 s24, s24, s25')
    k('s_lshr_b32 s25, s2, 5')
    k('s_lshl_b32 s26, s3, 10')
    k('s_waitcnt lgkmcnt(0)')
    k('s_lshl_b32 s31, s24, 19')
    for d, b in ((8, 4), (12, 6)):
        k(f's_add_u32 s{d}, s{b}, s31')
        k(f's_addc_u32 s{d+1}, s{b+1}, 0')
        k(f's_sub_u32 s{d+2}, 0x1000000, s31')
        k(f's_mov_b32 s{d+3}, 0x00020000')
    srd(k, 16, 32, 576 * 4096 * 2)
    srd(k, 20, 34, 2048 * 576 * 2, L.H1)
    k('v_and_b32 v3, 15, v2')
    k('v_lshrrev_b32 v4, 4, v2')
    k('v_lshrrev_b32 v5, 5, v2')
    k('v_and_b32 v6, 31, v2')
    k('v_lshrrev_b32 v7, 2, v3')
    k('v_and_b32 v8, 3, v2')
    k('v_xor_b32 v9, v5, v3')
    k('v_lshlrev_b32 v9, 4, v9')
    k('v_lshl_add_u32 v9, v6, 8, v9')
    for s in range(8):
        k(f'v_xor_b32 v{AK+s}, {s << 5}, v9')
    k('v_and_b32 v10, 1, v4')
    k('v_lshlrev_b32 v10, 1, v10')
    k('v_lshrrev_b32 v11, 1, v8')
    k('v_add_u32 v10, v10, v11')
    k('v_lshlrev_b32 v10, 4, v10')
    k('v_and_b32 v11, 1, v2')
    k('v_lshl_add_u32 v10, v11, 3, v10')
    k('v_lshl_add_u32 v10, v7, 8, v10')
    for db in range(4):
        k(f'v_xor_b32 v11, {db}, v7')
        k(f'v_lshl_add_u32 v11, v11, 6, v10')
        k(f'v_lshl_add_u32 v{PR+db}, v5, 11, v11')
        k(f'v_lshl_add_u32 v11, v5, 10, v11')
        k(f'v_add_u32 v{AV+db}, {VRING}, v11')
    k('s_lshl_b32 s31, s3, 2')
    k('v_add_u32 v9, s31, v4')
    k('v_xor_b32 v10, v3, v9')
    k('v_lshlrev_b32 v10, 4, v10')
    k('v_lshlrev_b32 v11, 2, v4')
    k('v_xor_b32 v11, v3, v11')
    k('v_lshlrev_b32 v11, 4, v11')
    k('s_lshl_b32 s31, s24, 8')
    for n in range(4):
        k(f'v_add_u32 v12, {16*n}, v9')
        k(f'v_lshl_add_u32 v{DK+n}, v12, 8, v10')
        k(f'v_lshl_add_u32 v{DV+n}, v12, 8, v11')
        k(f'v_lshl_add_u32 v{PR+6+n}, v12, 13, v11')
        k(f'v_add_u32 v{PR+6+n}, s31, v{PR+6+n}')
    k('s_lshl_b32 s31, s25, 8')
    k('s_lshl_b32 s36, s3, 6')
    k('s_add_u32 s31, s31, s36')
    k('s_mov_b32 s37, s31')
    k('v_lshrrev_b32 v9, 2, v2')
    k('v_add_u32 v9, s31, v9')
    k('s_movk_i32 s36, 1152')
    k('v_mul_lo_u32 v9, v9, s36')
    k('v_xor_b32 v10, v8, v4')
    k('v_lshl_add_u32 v9, v10, 4, v9')
    for n in range(4):
        k(f'v_add_u32 v{PR+18+n}, {n*16*1152}, v9')
    k('v_lshrrev_b32 v9, 2, v6')
    k('v_and_b32 v9, 3, v9')
    k('v_xor_b32 v9, v5, v9')
    k('v_lshlrev_b32 v9, 4, v9')
    k('v_lshl_add_u32 v9, v6, 6, v9')
    k('s_lshl_b32 s36, s3, 12')
    k(f'v_add_u32 v{PR+4}, s36, v9')
    k(f'v_xor_b32 v{PR+5}, 32, v{PR+4}')
    k('s_lshl_b32 s38, s3, 12')

    def dma(tag, vo, srdreg, soff, ldsoff):
        k(f's_add_u32 m0, s26, {ldsoff}')
        k('s_nop 0')
        k.vmem(tag, f'buffer_load_dwordx4 v{vo}, s[{srdreg}:{srdreg+3}], {soff} offen lds')

    qslots = [40960, 106496, 131072, 16384, 81920]
    fcount = [0]
    def pool():
        b = FP + (fcount[0] % NPOOL) * 4
        fcount[0] += 1
        return b
    def Qacc(db, qb): return SB + (db * 2 + qb) * 16
    pf = {}
    def padd(pos, fn, prio=5):
        pf.setdefault(pos, []).append((prio, len(pf.get(pos, [])), fn))
    pm = {}
    QL = 6
    bpos = lambda j: 16 * j - QL - 1
    PS = -200
    def q_stage(j, p0, step):
        base = qslots[j % 5]
        p = p0
        for n in range(4):
            padd(p, lambda n=n: k(f's_add_u32 m0, s38, {base + n * 1024}'), 2)
            padd(p + step, lambda n=n: k.vmem(('q', j), f'buffer_load_dwordx4 v{PR+18+n}, s[20:23], s39 offen lds'), 2)
            p += 2 * step
        for m in range(2):
            padd(p, lambda m=m: k(f's_add_u32 m0, s26, {base + 16384 + m * 4096}'), 2)
            padd(p + step, lambda m=m: k.vmem(('q', j), f'buffer_load_dwordx4 v{PR+6+m}, s[16:19], s36 offen lds'), 2)
            p += 2 * step
        padd(p, lambda: k('s_add_u32 s39, s39, 64'), 2)
        padd(p, lambda: k(f's_add_u32 s36, s36, {32*8192}'), 2)
    def kv_stage(t, p0, step):
        p = p0
        for n in range(8):
            isv = n // 4
            padd(p, lambda n=n, isv=isv: k(f's_add_u32 m0, s26, {(VRING if isv else KRING) + t * 16384 + (n % 4) * 4096}'), 2)
            padd(p + step, lambda n=n, isv=isv: k.vmem(('kv', t), f'buffer_load_dwordx4 v{(DV if isv else DK) + n % 4}, s[{12 if isv else 8}:{15 if isv else 11}], {"s27" if t else "0"} offen lds'), 2)
            p += 2 * step
    k('s_mov_b32 s39, 0')
    k('s_mov_b32 s36, 0')
    k('s_mov_b32 s27, 16384')
    for j in range(3):
        q_stage(j, PS + 20 * j, 1)
    for j in range(18):
        def bar(j=j):
            k.wait(vm=('q', j))
            k('s_barrier')
            for db in range(4):
                k(f'v_add_u32 v{PR+10+(j%2)*4+db}, {qslots[j%5]+16384}, v{PR+db}')
        padd(bpos(j), bar, 0)
        if j + 3 < 18:
            q_stage(j + 3, bpos(j) + 1, 1)
        if j == 15:
            kv_stage(0, bpos(j) + 1, 1)
        if j == 16:
            kv_stage(1, bpos(j) + 1, 1)
        for s_ in range(2):
            for qb in range(2):
                hb = 128 + ((j % 2) * 4 + s_ * 2 + qb) * 4
                padd(max(bpos(j) + 1, 16 * j + 8 * s_ - QL), lambda j=j, s_=s_, qb=qb, hb=hb: k.lds(('hf', j, s_, qb),
                     f'ds_read_b128 {ar(hb,4)}, v{PR+4+s_} offset:{qslots[j%5] % 65536 + qb*2048}' if qslots[j % 5] < 65536 else
                     f'ds_read_b128 {ar(hb,4)}, v{PR+22+s_} offset:{qslots[j%5] - 81920 + qb*2048}'), 1)
            for db in range(4):
                b = pool(); use = 16 * j + (s_ * 4 + db) * 2
                av = PR + 10 + (j % 2) * 4 + db
                padd(use - QL, lambda j=j, s_=s_, db=db, b=b, av=av: k.lds(('wf', j, s_, db), f'ds_read_b64_tr_b16 {vr(b,2)}, v{av} offset:{s_*4096}'), 1)
                padd(use - QL + 1, lambda j=j, s_=s_, db=db, b=b, av=av: k.lds(('wf', j, s_, db), f'ds_read_b64_tr_b16 {vr(b+2,2)}, v{av} offset:{s_*4096+1024}'), 1)
                for qb in range(2):
                    hb = 128 + ((j % 2) * 4 + s_ * 2 + qb) * 4
                    d = vr(Qacc(db, qb), 16)
                    c = '0' if (j == 0 and s_ == 0) else d
                    pm[use + qb] = (f'v_mfma_f32_32x32x16_bf16 {d}, {vr(b,4)}, {ar(hb,4)}, {c}', [('wf', j, s_, db), ('hf', j, s_, qb)])
    for s_ in range(2):
        k(f'v_add_u32 v{PR+22+s_}, 81920, v{PR+4+s_}')
    for r in range(128):
        padd(40 + r, lambda r=r: k(f'v_accvgpr_write_b32 a{r}, 0'), 4)
    stamp(k, 1)
    for pos in range(PS, 288):
        if pos == 0: stamp(k, 2)
        if pos == 96: stamp(k, 3)
        if pos in pm:
            txt, nl = pm[pos]
            k.wait(lg=nl)
            k(txt)
        elif pos in pf:
            k('s_nop 0')
        for prio, _, fn in sorted(pf.get(pos, []), key=lambda x: (x[0], x[1])):
            fn()
    k('s_nop 15')
    k('s_nop 7')
    stamp(k, 4)
    k(f's_mov_b32 s36, {f32(math.log2(math.e) / math.sqrt(128.0))}')
    for db in range(4):
        for qb in range(2):
            q = Qacc(db, qb)
            for r in range(16):
                k(f'v_mul_f32 v{q+r}, s36, v{q+r}')
            for p in range(8):
                k(f'v_cvt_pk_bf16_f32 v{q+p}, v{q+2*p}, v{q+2*p+1}')
            k('s_nop 1')
            for g0 in (0, 2):
                x, y = q + 2 * g0, q + 2 * g0 + 2
                k(f'v_permlane32_swap_b32 v{x}, v{y}')
                k(f'v_permlane32_swap_b32 v{x+1}, v{y+1}')
            k('s_nop 0')
            for p in range(8):
                k(f'v_accvgpr_write_b32 a{Qreg(qb, 2*db + p//4) + p%4}, v{q+p}')
    for r in range(32):
        k(f'v_mov_b32 v{NM+r}, 0')
    k(f'v_mov_b32 v{LSUM}, 0')
    k(f'v_mov_b32 v{LSUM+1}, 0')
    k('s_mov_b32 s29, -1.0')
    k('s_mov_b32 s30, 0xff800000')
    k('s_mov_b32 s27, 32768')
    k('s_mov_b32 s28, 8')
    k.wait_all()
    stamp(k, 5)

    NIT = 8 * 4
    G0 = -64
    fills = {}
    def add(pos, fn, prio=5):
        fills.setdefault(pos, []).append((prio, len(fills.get(pos, [])), fn))
    mf = {}
    fragbuf = {}
    usel = []
    for i in range(-1, NIT):
        u = i + 1
        for s in range(8):
            usel.append((32 * i + 2 * s, ('K', u, s)))
        if i >= 0:
            for ks in range(2):
                for db in range(4):
                    usel.append((32 * i + 16 + 2 * (4 * ks + db), ('V', i, ks, db)))
    fcount[0] = 0
    for pos, tag in usel:
        b = pool(); fragbuf[tag] = b
        if tag[0] == 'K':
            _, u, s = tag
            off = KRING + ((u // 2) % 4) * 16384 + (u % 2) * 8192
            add(pos - LAG, lambda tag=tag, b=b, s=s, off=off: k.lds(tag, f'ds_read_b128 {vr(b,4)}, v{AK+s} offset:{off}'), 1)
        else:
            _, u, ks, db = tag
            off = ((u // 2) % 4) * 16384 + (u % 2) * 8192 + ks * 4096
            add(pos - LAG, lambda tag=tag, b=b, db=db, off=off: k.lds(tag, f'ds_read_b64_tr_b16 {vr(b,2)}, v{AV+db} offset:{off}'), 1)
            add(pos - LAG + 1, lambda tag=tag, b=b, db=db, off=off: k.lds(tag, f'ds_read_b64_tr_b16 {vr(b+2,2)}, v{AV+db} offset:{off+2048}'), 1)
    for i in range(-1, NIT):
        u = i + 1
        for s in range(8):
            for qb in range(2):
                d = vr(S(u % 2, qb), 16)
                c = vr(NM + 16 * qb, 16) if s == 0 else d
                mf[32 * i + 2 * s + qb] = (f'v_mfma_f32_32x32x16_bf16 {d}, {vr(fragbuf[("K",u,s)],4)}, {ar(Qreg(qb,s),4)}, {c}', ('K', u, s))
        if i >= 0:
            for ks in range(2):
                for db in range(4):
                    for qb in range(2):
                        o = ar(Oacc(db, qb), 16)
                        mf[32 * i + 16 + 2 * (4 * ks + db) + qb] = (
                            f'v_mfma_f32_32x32x16_bf16 {o}, {vr(fragbuf[("V",i,ks,db)],4)}, {vr(P(i%2,qb,4*ks),4)}, {o}', ('V', i, ks, db))
    def sm_ops(par):
        ops = []
        n = 0
        pend = None
        for qb in range(2):
            for j in range(8):
                a, b = ET + (2 * n) % 8, ET + (2 * n + 1) % 8
                n += 1
                ops.append(f'v_exp_f32 v{a}, v{S(par,qb,2*j)}')
                ops.append(f'v_exp_f32 v{b}, v{S(par,qb,2*j+1)}')
                if pend: ops.extend(pend)
                if j == 0:
                    pend = [f'v_add_f32 v{USUM+qb}, v{a}, v{b}']
                else:
                    pend = [f'v_add_f32 v{USUM+qb}, v{USUM+qb}, v{a}', f'v_add_f32 v{USUM+qb}, v{USUM+qb}, v{b}']
                pend.append(f'v_cvt_pk_bf16_f32 v{P(par,qb,j)}, v{a}, v{b}')
        ops.append('s_nop 0')
        ops.extend(pend)
        return ops
    sites = []
    for u in range(0, NIT + 1):
        ops = sm_ops(u % 2)
        w0, w1 = 32 * (u - 1) + 18, 32 * u + 14
        npos = w1 - w0 + 1
        cost = [2 if 'v_exp' in o else 1 for o in ops]
        tot = sum(cost); acc = 0
        for o, c in zip(ops, cost):
            pos = w0 + min(npos - 1, int(acc * npos / tot))
            acc += c
            add(pos, lambda o=o: k(o), 3)
        def chk(u=u):
            site = u % 8
            k(f'v_max_f32 v{ET}, v{USUM}, v{USUM+1}')
            k(f'v_cmp_lt_f32 vcc, s29, v{ET}')
            k(f's_cbranch_vccnz .attn_fbs{site}')
            k.label(f'.attn_back{site}')
            k(f'v_add_f32 v{LSUM}, v{LSUM}, v{USUM}')
            k(f'v_add_f32 v{LSUM+1}, v{LSUM+1}, v{USUM+1}')
        add(32 * u + 15, chk, 9)
    for t in range(0, NIT // 2 + 1):
        bp = 32 * (2 * t - 1) - LAG - 1
        def bar(t=t):
            k.wait(vm=('kv', t))
            k('s_barrier')
        add(bp, bar, 0)
        for n in range(8):
            slot = (t + 2) % 4
            isv = n // 4
            lo = (VRING if isv else KRING) + slot * 16384 + (n % 4) * 4096
            add(bp + 1 + 2 * n, lambda lo=lo: k(f's_add_u32 m0, s26, {lo}'), 2)
            add(bp + 2 + 2 * n, lambda t=t, n=n, isv=isv: k.vmem(('kv', t + 2),
                f'buffer_load_dwordx4 v{(DV if isv else DK) + n % 4}, s[{12 if isv else 8}:{15 if isv else 11}], s27 offen lds'), 2)
        add(bp + 18, lambda: k('s_add_u32 s27, s27, 16384'), 2)
    marks = {}
    k.vm = [('kv', 0)] * 8 + [('kv', 1)] * 8
    add(-16, lambda: k('s_nop 15'), 0)
    for pos in range(G0, 32 * NIT):
        if pos % 256 == 0:
            marks[pos // 256] = len(k.lines)
        if pos in mf:
            txt, need = mf[pos]
            k.wait(lg=need)
            k(txt)
        for prio, _, fn in sorted(fills.get(pos, []), key=lambda x: (x[0], x[1])):
            fn()
    marks[NIT // 8] = len(k.lines)
    per0 = k.lines[marks[0]:marks[1]]
    per1 = k.lines[marks[1]:marks[2]]
    per2 = k.lines[marks[2]:marks[3]]
    assert per1 == per2, 'not periodic'
    if per0 != per1:
        diff = [(a, b) for a, b in zip(per0, per1) if a != b]
        print('period0 differs:', len(per0), len(per1), diff[:10])
        raise SystemExit
    k.lines = k.lines[:marks[0]]
    k.label('.attn_loop')
    k.lines += per0
    k('s_sub_u32 s28, s28, 1')
    k('s_cmp_lg_u32 s28, 0')
    k('s_cbranch_scc1 .attn_loop')
    k('s_nop 15')
    k('s_nop 7')
    k('s_waitcnt vmcnt(0) lgkmcnt(0)')
    stamp(k, 6)
    srd(k, 16, 34, 2048 * 4096 * 2, L.O)
    k('v_add_u32 v9, s37, v6')
    k('v_lshlrev_b32 v9, 13, v9')
    k('v_lshl_add_u32 v9, v5, 4, v9')
    k('s_lshl_b32 s31, s24, 8')
    k('v_add_u32 v9, s31, v9')
    k(f'v_add_u32 v10, {32*8192}, v9')
    for qb in range(2):
        k(f'v_mov_b32 v{FT}, v{LSUM+qb}')
        k('s_nop 1')
        k(f'v_permlane32_swap_b32 v{FT}, v{LSUM+qb}')
        k('s_nop 0')
        k(f'v_add_f32 v{FT}, v{FT}, v{LSUM+qb}')
        k(f'v_rcp_f32 v{FT+1+qb}, v{FT}')
    k('s_nop 0')
    n = 0
    for qb in range(2):
        for db in range(4):
            t = SB + (n % 4) * 24; n += 1
            for r in range(16):
                k(f'v_accvgpr_read_b32 v{t+r}, a{Oacc(db,qb)+r}')
            for r in range(16):
                k(f'v_mul_f32 v{t+r}, v{t+r}, v{FT+1+qb}')
            for p in range(8):
                k(f'v_cvt_pk_bf16_f32 v{t+16+p}, v{t+2*p}, v{t+2*p+1}')
            k('s_nop 1')
            for g0 in (0, 2):
                x, y = t + 16 + 2 * g0, t + 16 + 2 * g0 + 2
                k(f'v_permlane32_swap_b32 v{x}, v{y}')
                k(f'v_permlane32_swap_b32 v{x+1}, v{y+1}')
            for g0 in (0, 2):
                k(f'buffer_store_dwordx4 {vr(t+16+2*g0,4)}, v{9+qb}, s[16:19], 0 offen offset:{db*64+g0*16}')
    stamp_out(k, 7, '.attn_end')
    k.label('.attn_end')
    k('s_endpgm')
    for site in range(8):
        k.label(f'.attn_fbs{site}')
        k(f's_call_b64 s[40:41], .attn_fb{site%2}')
        k(f's_branch .attn_back{site}')
    for par in range(2):
        k.label(f'.attn_fb{par}')
        k('s_nop 15')
        k('s_nop 15')
        for qb in range(2):
            s0 = S(par, qb)
            k(f'v_max3_f32 v{FT}, v{s0}, v{s0+1}, v{s0+2}')
            for j in range(3, 15, 2):
                k(f'v_max3_f32 v{FT}, v{FT}, v{s0+j}, v{s0+j+1}')
            k(f'v_max_f32 v{FT}, v{FT}, v{s0+15}')
            k(f'v_mov_b32 v{FT+1}, v{FT}')
            k('s_nop 1')
            k(f'v_permlane32_swap_b32 v{FT}, v{FT+1}')
            k('s_nop 0')
            k(f'v_max_f32 v{FT}, v{FT}, v{FT+1}')
            k(f'v_max_f32 v{FT}, s30, v{FT}')
            k(f'v_max_f32 v{FT+1}, 0, v{FT}')
            k(f'v_sub_f32 v{FT+1}, 0, v{FT+1}')
            k(f'v_exp_f32 v{FT+1}, v{FT+1}')
            k(f'v_sub_f32 v{NM+16*qb}, v{NM+16*qb}, v{FT}')
            for r in range(1, 16):
                k(f'v_mov_b32 v{NM+16*qb+r}, v{NM+16*qb}')
            for r in range(16):
                k(f'v_sub_f32 v{s0+r}, v{s0+r}, v{FT}')
                k(f'v_sub_f32 v{S(1-par,qb,r)}, v{S(1-par,qb,r)}, v{FT}')
            k(f'v_mul_f32 v{LSUM+qb}, v{LSUM+qb}, v{FT+1}')
            for db in range(4):
                for r0 in range(0, 16, 8):
                    for r in range(8):
                        k(f'v_accvgpr_read_b32 v{FT+2+r}, a{Oacc(db,qb)+r0+r}')
                    for r in range(8):
                        k(f'v_mul_f32 v{FT+2+r}, v{FT+2+r}, v{FT+1}')
                    for r in range(8):
                        k(f'v_accvgpr_write_b32 a{Oacc(db,qb)+r0+r}, v{FT+2+r}')
        for o in sm_ops(par):
            k(o)
        k(f's_mov_b32 s29, {f32(65536.0)}')
        k('s_mov_b32 s30, 0')
        k('s_nop 3')
        k('s_setpc_b64 s[40:41]')
    return k.text(512, 102, 256)
```

```python
from fw import *
import small
from attn import stamp, stamp_out, DIAG
import layout as L
import os
EXP = os.environ.get('GEXP', '')

STAGE = 34816
NSLOT = 4
LDS = STAGE * NSLOT
WOFF = 16384
WSUB = 9216
NT = 512

def vr(b, n): return f'v[{b}:{b+n-1}]'
def ar(b, n): return f'a[{b}:{b+n-1}]'


def k_gemm(mode):
    name = {'ffn1': 'ffn1_kernel', 'wo': 'wo_kernel', 'down': 'down_kernel'}[mode]
    ffn = mode == 'ffn1'
    k = K(name)
    end = f'.{name}_end'
    MB = 2
    if ffn:
        astride, wstride, nst = 1152, 9216, 18
        NB = 18
        a_adv, w_adv = 64, 32 * 9216
    else:
        Ktot = 4096 if mode == 'wo' else 4608
        astride, wstride, nst = Ktot * 2, 1152, Ktot // 4 // 64
        NB = 9
        a_adv, w_adv = 128, 64 * 1152
    NM = MB * NB
    DA, DW, RA, RW = 16, 18, 22, 26
    AF = 32
    WF = 48
    NWP = 8
    EP = 32
    NARCH = 80
    def acc(i): return ar(4 * i, 4)

    k('s_cmp_ge_u32 s2, 256')
    k(f's_cbranch_scc1 {end if ffn else end + "_row"}')
    stamp(k, 0)
    k(f's_load_dwordx2 s[4:5], s[0:1], {WS}')
    k(f's_load_dwordx2 s[34:35], s[0:1], {DBG}')
    if ffn:
        k(f's_load_dwordx4 s[36:39], s[0:1], {B_WG}')
    else:
        k(f's_load_dwordx2 s[36:37], s[0:1], {A_WO if mode == "wo" else B_WD}')
    k('v_lshrrev_b32 v1, 6, v0')
    k('v_and_b32 v2, 63, v0')
    k('s_nop 0')
    k('v_readfirstlane_b32 s3, v1')
    if ffn:
        k('s_and_b32 s24, s2, 7')
        k('s_lshl_b32 s24, s24, 2')
        k('s_bfe_u32 s25, s2, 0x20003')
        k('s_add_u32 s24, s24, s25')
        k('s_lshr_b32 s25, s2, 5')
        k('s_lshl_b32 s25, s25, 8')
        k('s_mov_b32 s23, 0')
        k('s_mov_b32 s21, s3')
        k('s_mov_b32 s22, 0')
    else:
        k('s_bfe_u32 s23, s2, 0x20001')
        k('s_and_b32 s25, s2, 1')
        k('s_lshl_b32 s25, s25, 3')
        k('s_bfe_u32 s24, s2, 0x30003')
        k('s_add_u32 s25, s25, s24')
        k('s_lshl_b32 s25, s25, 7')
        k('s_lshr_b32 s24, s2, 6')
        k('s_and_b32 s21, s3, 3')
        k('s_lshr_b32 s22, s3, 2')
    k('s_lshl_b32 s26, s3, 10')
    k('s_cmp_lt_u32 s3, 2')
    k('s_cselect_b32 s48, -1, 0')
    k('s_mov_b32 s49, s48')
    k('s_waitcnt lgkmcnt(0)')
    asz = {'ffn1': 2048 * 576 * 2, 'wo': 2048 * 4096 * 2, 'down': 2048 * 4608 * 2}[mode]
    aoff = {'ffn1': L.H2, 'wo': L.O, 'down': L.HM}[mode]
    wsz = {'ffn1': 576 * 4608 * 2, 'wo': 4096 * 576 * 2, 'down': 4608 * 576 * 2}[mode]
    srd(k, 8, 4, asz, aoff)
    for j in range(3):
        d = 80 + 4 * j
        if ffn:
            k(f's_add_u32 s30, s3, {8*j}')
            k('s_cmp_ge_u32 s30, 9')
            k(f's_cselect_b32 s{d}, s38, s36')
            k(f's_cselect_b32 s{d+1}, s39, s37')
        else:
            k(f's_mov_b32 s{d}, s36')
            k(f's_mov_b32 s{d+1}, s37')
        k(f's_mov_b32 s{d+2}, {wsz}')
        k(f's_mov_b32 s{d+3}, 0x00020000')
    k('v_and_b32 v3, 15, v2')
    k('v_lshrrev_b32 v4, 4, v2')
    k('v_lshrrev_b32 v5, 2, v3')
    k('v_and_b32 v6, 3, v2')
    k('v_lshrrev_b32 v7, 2, v2')
    k('v_sub_u32 v8, 0, v4')
    k('v_and_b32 v8, 3, v8')
    k('v_xor_b32 v8, v6, v8')
    k('v_lshlrev_b32 v8, 4, v8')
    k(f's_mov_b32 s31, {astride}')
    if not ffn:
        k(f's_mul_i32 s29, s23, {nst * 128}')
    for j in range(2):
        if ffn:
            k(f's_add_u32 s30, s3, {8*j}')
            k('s_lshl_b32 s30, s30, 4')
            k('s_add_u32 s30, s30, s25')
            k('v_add_u32 v9, s30, v7')
            k('v_mul_lo_u32 v9, v9, s31')
            k(f'v_add_u32 v{DA+j}, v9, v8')
        else:
            k('s_lshl_b32 s28, s3, 4')
            k('s_add_u32 s28, s28, s25')
            k('v_add_u32 v9, s28, v7')
            k('v_mul_lo_u32 v9, v9, s31')
            k(f's_add_u32 s28, s29, {64*j}')
            k('v_add_u32 v9, s28, v9')
            k(f'v_add_u32 v{DA+j}, v9, v8')
    k(f's_mov_b32 s31, {wstride}')
    k('s_mul_i32 s29, s24, 288')
    if not ffn:
        k(f's_mul_i32 s28, s23, {nst * 64 * 1152}')
        k('s_add_u32 s29, s29, s28')
    for j in range(3):
        k(f's_add_u32 s30, s3, {8*j}')
        k('s_min_u32 s30, s30, 17')
        k('s_cmp_ge_u32 s30, 9')
        k('s_cselect_b32 s28, 9, 0')
        k('s_sub_u32 s27, s30, s28')
        k('s_lshl_b32 s27, s27, 6')
        k('v_add_u32 v9, s27, v2')
        k('s_movk_i32 s27, 3641')
        k('v_mul_lo_u32 v10, v9, s27')
        k('v_lshrrev_b32 v10, 16, v10')
        k('v_mul_u32_u24 v11, 18, v10')
        k('v_sub_u32 v11, v9, v11')
        k('v_and_b32 v12, 0x13, v10')
        k('v_and_b32 v13, 4, v10')
        k('v_lshlrev_b32 v13, 1, v13')
        k('v_or_b32 v12, v12, v13')
        k('v_and_b32 v13, 8, v10')
        k('v_lshrrev_b32 v13, 1, v13')
        k('v_or_b32 v12, v12, v13')
        k('v_mul_lo_u32 v12, v12, s31')
        k('v_lshl_add_u32 v12, v11, 4, v12')
        k(f'v_add_u32 v{DW+j}, s29, v12')
        if not ffn:
            k('s_cmp_ge_u32 s30, 9')
            k(f's_cselect_b32 s28, {32*1152}, 0')
            k(f'v_add_u32 v{DW+j}, s28, v{DW+j}')
        k(f's_lshl_b32 s{44+j}, s30, 10')
        k(f's_add_u32 s{44+j}, s{44+j}, {WOFF}')
    k('s_mov_b32 s27, 0')
    k('s_mov_b32 s28, 0')

    LAGM = int(os.environ.get('LAGM', '10'))
    fills = {}
    def add(pos, fn, prio=5):
        fills.setdefault(pos, []).append((prio, len(fills.get(pos, [])), fn))
    mf = {}
    wcount = [0]
    def dma_stage(t, p0, step):
        base = (t % NSLOT) * STAGE
        p = p0
        for j in range(2):
            add(p, lambda j=j: k(f's_add_u32 m0, s26, {base + j*8192}'), 2)
            add(p + step, lambda j=j: k.vmem(('st', t), f'buffer_load_dwordx4 v{DA+j}, s[8:11], s27 offen lds'), 2)
            p += 2 * step
        for j in range(3):
            add(p, lambda j=j: k(f's_add_u32 m0, s{44+j}, {base}'), 2)
            def ld(j=j):
                if j == 2: k('s_mov_b64 exec, s[48:49]')
                k.vmem(('st', t), f'buffer_load_dwordx4 v{DW+j}, s[{80+4*j}:{83+4*j}], s28 offen lds')
                if j == 2: k('s_mov_b64 exec, -1')
            add(p + step, ld, 2)
            p += 2 * step
        add(p, lambda: k(f's_add_u32 s27, s27, {a_adv}'), 2)
        add(p, lambda: k(f's_add_u32 s28, s28, {w_adv}'), 2)
    P0 = -1000
    for t in range(3):
        dma_stage(t, P0 + t * 100, 1)
    def rdaddr():
        k('v_sub_u32 v8, 0, v5')
        k('v_and_b32 v8, 3, v8')
        k('v_xor_b32 v8, v4, v8')
        k('v_lshlrev_b32 v8, 4, v8')
        k('v_lshl_add_u32 v8, v3, 6, v8')
        k('s_lshl_b32 s30, s21, 11')
        k('s_lshl_b32 s31, s22, 13')
        k('s_add_u32 s30, s30, s31')
        k('v_add_u32 v8, s30, v8')
        k('v_lshrrev_b32 v9, 1, v4')
        k('v_lshlrev_b32 v9, 4, v9')
        k('v_and_b32 v10, 1, v4')
        k('v_lshl_add_u32 v9, v10, 2, v9')
        k('v_add_u32 v9, v9, v5')
        k('v_mul_u32_u24 v9, 288, v9')
        k('v_lshl_add_u32 v9, v6, 3, v9')
        k(f's_mul_i32 s31, s22, {WSUB}')
        k('v_add_u32 v9, s31, v9')
        for s in range(NSLOT):
            k(f'v_add_u32 v{RA+s}, {s*STAGE}, v8')
            k(f'v_add_u32 v{RW+s}, {s*STAGE+WOFF}, v9')
    add(P0 + 500, rdaddr, 1)
    for t in range(nst):
        slot = t % NSLOT
        b0 = t * NM
        bp = b0 - LAGM - 1
        def bar(t=t):
            k.wait(vm=('st', t))
            k('s_barrier')
        add(bp, bar, 0)
        if t >= 1 and t + 2 < nst:
            dma_stage(t + 2, bp + 1, 1)
        aset = (t % 2) * 8
        for mb in range(MB):
            r = AF + aset + 4 * mb
            add(bp + 1, lambda r=r, mb=mb, t=t, slot=slot: k.lds(('a', t, mb),
                f'ds_read_b128 {vr(r,4)}, v{RA+slot} offset:{mb*1024}'), 1)
        for nb in range(NB):
            wb = WF + (wcount[0] % NWP) * 4; wcount[0] += 1
            use = b0 + nb * MB
            off = (nb // 9) * WSUB + (nb % 9) * 32
            pos = max(bp + 1, use - LAGM)
            add(pos, lambda wb=wb, off=off, t=t, nb=nb, slot=slot: k.lds(('w', t, nb),
                f'ds_read_b64_tr_b16 {vr(wb,2)}, v{RW+slot} offset:{off}'), 1)
            add(pos + 1, lambda wb=wb, off=off, t=t, nb=nb, slot=slot: k.lds(('w', t, nb),
                f'ds_read_b64_tr_b16 {vr(wb+2,2)}, v{RW+slot} offset:{off+2304}'), 1)
            for mb in range(MB):
                a = acc(nb * MB + mb)
                c = '0' if t == 0 else a
                mf[use + mb] = (f'v_mfma_f32_16x16x32_bf16 {a}, {vr(wb,4)}, {vr(AF+aset+4*mb,4)}, {c}',
                                [('w', t, nb), ('a', t, mb)])
    stamp(k, 1)
    for pos in range(P0, nst * NM):
        if pos == 0: stamp(k, 2)
        if pos == (nst // 2) * NM: stamp(k, 3)
        if pos in mf:
            txt, need = mf[pos]
            k.wait(lg=need)
            k(txt)
        elif pos in fills:
            k('s_nop 0')
        for prio, _, fn in sorted(fills.get(pos, []), key=lambda x: (x[0], x[1])):
            fn()
    k('s_nop 15')
    k('s_waitcnt vmcnt(0) lgkmcnt(0)')
    stamp(k, 4)
    if ffn:
        srd(k, 12, 4, 2048 * 4608 * 2, L.HM)
        k('s_lshl_b32 s30, s3, 5')
        k('s_add_u32 s30, s30, s25')
        k('v_add_u32 v8, s30, v3')
        k('s_movk_i32 s31, 9216')
        k('v_mul_lo_u32 v8, v8, s31')
        k('s_mul_i32 s29, s24, 288')
        k('v_add_u32 v8, s29, v8')
        k('v_and_b32 v9, 1, v4')
        k('v_lshrrev_b32 v10, 1, v4')
        k('v_lshlrev_b32 v9, 5, v9')
        k('v_lshl_add_u32 v9, v10, 4, v9')
        k('v_add_u32 v9, v8, v9')
        k('v_lshl_add_u32 v10, v4, 3, v8')
        n = 0
        for mb in range(MB):
            k(f's_mov_b32 s30, {mb*16*9216}')
            for nb0 in range(0, 9, 2):
                t = EP + (n % 2) * 20; n += 1
                blocks = [nb0] if nb0 == 8 else [nb0, nb0 + 1]
                for bi, nb in enumerate(blocks):
                    g, u = nb * MB + mb, (nb + 9) * MB + mb
                    x = t + 4 + 8 * bi
                    for r in range(4):
                        k(f'v_accvgpr_read_b32 v{x+r}, a{4*g+r}')
                        k(f'v_accvgpr_read_b32 v{x+4+r}, a{4*u+r}')
                    for r in range(4):
                        k(f'v_max_f32 v{x+r}, 0, v{x+r}')
                    for h in range(4):
                        k(f'v_cvt_pk_bf16_f32 v{x+2*h}, v{x+2*h}, v{x+2*h+1}')
                    for h in range(4):
                        k(f'v_and_b32 v{x+2*h+1}, 0xffff0000, v{x+2*h}')
                        k(f'v_lshlrev_b32 v{x+2*h}, 16, v{x+2*h}')
                    for r in range(4):
                        k(f'v_mul_f32 v{x+r}, v{x+r}, v{x+4+r}')
                    k(f'v_cvt_pk_bf16_f32 v{t+2*bi}, v{x}, v{x+1}')
                    k(f'v_cvt_pk_bf16_f32 v{t+2*bi+1}, v{x+2}, v{x+3}')
                if len(blocks) == 2:
                    k('s_nop 1')
                    k(f'v_permlane16_swap_b32 v{t}, v{t+2}')
                    k(f'v_permlane16_swap_b32 v{t+1}, v{t+3}')
                    k(f'buffer_store_dwordx4 {vr(t,4)}, v9, s[12:15], s30 offen offset:{nb0*32}')
                else:
                    k(f'buffer_store_dwordx2 {vr(t,2)}, v10, s[12:15], s30 offen offset:{nb0*32}')
        stamp(k, 5)
        stamp_out(k, 6, end)
    else:
        srd(k, 40, 4, 16384, L.CNT + (0 if mode == 'wo' else 16384))
        k('s_lshr_b32 s32, s25, 7')
        k('s_lshl_b32 s32, s32, 8')
        k('s_barrier')
        k('v_lshlrev_b32 v8, 4, v2')
        k('s_lshl_b32 s30, s21, 1')
        k('s_add_u32 s31, s30, s22')
        k('s_xor_b32 s30, s31, 1')
        k('s_mul_i32 s30, s30, 9216')
        k('s_mul_i32 s31, s31, 9216')
        k('v_add_u32 v7, s30, v8')
        k('v_add_u32 v8, s31, v8')
        k('s_cmp_eq_u32 s22, 0')
        k(f's_cbranch_scc1 {end}_w0')
        for j in range(9):
            k(f'ds_write_b128 v7, {acc(2*j)} offset:{j*1024}')
        k(f's_branch {end}_w1')
        k.label(f'{end}_w0')
        for j in range(9):
            k(f'ds_write_b128 v7, {acc(2*j+1)} offset:{j*1024}')
        k.label(f'{end}_w1')
        srd(k, 12, 4, 4 * 2048 * 576 * 2, L.P1 if mode == 'wo' else L.P2)
        k('s_lshl_b32 s30, s21, 5')
        k('s_add_u32 s30, s30, s25')
        k('s_lshl_b32 s31, s22, 4')
        k('s_add_u32 s30, s30, s31')
        k('s_lshl_b32 s31, s23, 11')
        k('s_add_u32 s30, s30, s31')
        k('v_add_u32 v12, s30, v3')
        k('s_movk_i32 s31, 1152')
        k('v_mul_lo_u32 v12, v12, s31')
        k('s_mul_i32 s29, s24, 288')
        k('v_add_u32 v12, s29, v12')
        k('v_and_b32 v9, 1, v4')
        k('v_lshrrev_b32 v10, 1, v4')
        k('v_lshlrev_b32 v9, 5, v9')
        k('v_lshl_add_u32 v9, v10, 4, v9')
        k('v_add_u32 v9, v12, v9')
        k('v_lshl_add_u32 v10, v4, 3, v12')
        k('s_waitcnt lgkmcnt(0)')
        k('s_barrier')
        SUM = 32
        for j in range(9):
            k(f'ds_read_b128 {vr(SUM+4*j,4)}, v8 offset:{j*1024}')
        k('s_cmp_eq_u32 s22, 0')
        k(f's_cbranch_scc1 {end}_a0')
        for w_ in (1, 0):
            if w_ == 0: k.label(f'{end}_a0')
            for j in range(9):
                for r in range(4):
                    k(f'v_accvgpr_read_b32 v{72+4*j+r}, a{4*(2*j+w_)+r}')
            if w_ == 1: k(f's_branch {end}_a1')
        k.label(f'{end}_a1')
        for j in range(9):
            k(f's_waitcnt lgkmcnt({8-j})')
            for r in range(4):
                k(f'v_add_f32 v{SUM+4*j+r}, v{SUM+4*j+r}, v{72+4*j+r}')
            t = 112 + 2 * j
            k(f'v_cvt_pk_bf16_f32 v{t}, v{SUM+4*j}, v{SUM+4*j+1}')
            k(f'v_cvt_pk_bf16_f32 v{t+1}, v{SUM+4*j+2}, v{SUM+4*j+3}')
            if j % 2 == 1:
                k('s_nop 1')
                k(f'v_permlane16_swap_b32 v{t-2}, v{t}')
                k(f'v_permlane16_swap_b32 v{t-1}, v{t+1}')
                k(f'buffer_store_dwordx4 {vr(t-2,4)}, v9, s[12:15], 0 offen offset:{(j-1)*32} sc1')
            if j == 8:
                k(f'buffer_store_dwordx2 {vr(t,2)}, v10, s[12:15], 0 offen offset:{j*32} sc1')
        stamp(k, 5)
        stamp_out(k, 6, end)
        if DIAG: srd(k, 40, 4, 16384, L.CNT + (0 if mode == 'wo' else 16384))
        k('v_mov_b32 v1, 1')
        k('v_mov_b32 v2, 0')
        k('s_waitcnt vmcnt(0)')
        k('s_barrier')
        k('s_cmp_lg_u32 s3, 0')
        k(f's_cbranch_scc1 {end}')
        k('s_mov_b64 exec, 1')
        k('buffer_atomic_add v1, v2, s[40:43], s32 offen sc1')
        k('s_endpgm')
        k.label(end + '_row')
        k('s_cmp_ge_u32 s2, 256+128')
        k(f's_cbranch_scc1 {end}')
        k('s_sub_u32 s36, s2, 256')
        small.row_body(k, 'ln2' if mode == 'wo' else 'fin', 's36', 4, True)
    k.label(end)
    k('s_endpgm')
    if ffn:
        return k.text(NARCH + 144, 102, NARCH)
    return k.text(248, 102, 176)
```

```python
from fw import *
import layout as L
import struct

LOG2E = 0x3fb8aa3b


def k_mod():
    k = K('mod_kernel')
    k('s_cmp_ge_u32 s2, 27')
    k('s_cbranch_scc1 .mod_ln1')
    k(f's_load_dwordx2 s[34:35], s[0:1], {DBG}')
    k(f's_load_dwordx2 s[4:5], s[0:1], {C_}')
    k(f's_load_dwordx2 s[6:7], s[0:1], {WMOD}')
    k(f's_load_dwordx2 s[20:21], s[0:1], {WS}')
    k('v_lshrrev_b32 v1, 6, v0')
    k('v_and_b32 v2, 63, v0')
    k('s_nop 0')
    k('v_readfirstlane_b32 s3, v1')
    k('s_waitcnt lgkmcnt(0)')
    srd(k, 8, 4, 1152)
    srd(k, 12, 6, 576 * 3456 * 2)
    srd(k, 16, 20, 3456 * 4, L.MOD)
    srd(k, 44, 20, 32768, L.CNT)
    k('s_cmp_lg_u32 s2, 0')
    k('s_cbranch_scc1 .mod_nz')
    k('v_lshlrev_b32 v6, 8, v0')
    k('v_mov_b32 v7, 0')
    k('buffer_store_dword v7, v6, s[44:47], 0 offen')
    k.label('.mod_nz')
    k('s_mul_i32 s22, s3, 72')
    k('v_lshlrev_b32 v3, 1, v2')
    k('buffer_load_ushort v4, v3, s[8:11], s22 offen')
    k('s_mul_i32 s23, s3, 36*6912')
    k('s_lshl_b32 s24, s2, 8')
    k('s_add_u32 s23, s23, s24')
    k('v_lshlrev_b32 v5, 2, v2')
    for i in range(36):
        if i % 1 == 0:
            k(f's_add_u32 s25, s23, {i*6912}')
        k(f'buffer_load_dword v{16+i}, v5, s[12:15], s25 offen')
    k('s_waitcnt vmcnt(36)')
    k('v_lshlrev_b32 v4, 16, v4')
    k(f's_mov_b32 s26, {LOG2E}')
    k('v_mul_f32 v6, s26, v4')
    k('v_sub_f32 v6, 0, v6')
    k('v_exp_f32 v6, v6')
    k('s_nop 0')
    k('v_add_f32 v6, 1.0, v6')
    k('v_rcp_f32 v6, v6')
    k('s_nop 0')
    k('v_mul_f32 v6, v4, v6')
    k('v_cvt_pk_bf16_f32 v6, v6, v6')
    k('v_lshlrev_b32 v6, 16, v6')
    k('v_mov_b32 v8, 0')
    k('v_mov_b32 v9, 0')
    k('s_waitcnt vmcnt(0)')
    for i in range(36):
        k(f'v_readlane_b32 s27, v6, {i}')
        k(f'v_lshlrev_b32 v10, 16, v{16+i}')
        k(f'v_and_b32 v11, 0xffff0000, v{16+i}')
        k(f'v_fmac_f32 v8, s27, v10')
        k(f'v_fmac_f32 v9, s27, v11')
    k('v_lshlrev_b32 v12, 3, v0')
    k('ds_write_b64 v12, v[8:9]')
    k('s_waitcnt lgkmcnt(0)')
    k('s_barrier')
    k('s_cmp_lg_u32 s3, 0')
    k('s_cbranch_scc1 .mod_end')
    for i in range(16):
        k(f'ds_read_b64 v[{16+2*i}:{17+2*i}], v12 offset:{i*512}')
    k('s_waitcnt lgkmcnt(0)')
    for i in range(1, 16):
        k(f'v_add_f32 v16, v16, v{16+2*i}')
        k(f'v_add_f32 v17, v17, v{17+2*i}')
    k('v_cvt_pk_bf16_f32 v18, v16, v17')
    k('v_lshlrev_b32 v16, 16, v18')
    k('v_and_b32 v17, 0xffff0000, v18')
    k('s_lshl_b32 s24, s2, 9')
    k('buffer_store_dwordx2 v[16:17], v12, s[16:19], s24 offen sc1')
    srd(k, 40, 34, 256)
    k('v_mov_b32 v1, 1')
    k('v_mov_b32 v2, 0')
    k('s_waitcnt vmcnt(0)')
    k('s_mov_b64 exec, 1')
    k('buffer_atomic_add v1, v2, s[40:43], 0 offen sc1')
    k('s_endpgm')
    k.label('.mod_ln1')
    k('s_cmp_ge_u32 s2, 27+64')
    k('s_cbranch_scc1 .mod_end')
    k('s_sub_u32 s36, s2, 27')
    row_body(k, 'ln1', 's36', 5, True)
    k.label('.mod_end')
    k('s_endpgm')
    return k.text(128, 48)


def half_reduce(k, v, tmp):
    for m in (1, 2, 4, 8, 16):
        k(f'ds_swizzle_b32 v{tmp}, v{v} offset:{(m << 10) | 0x1f}')
        k('s_waitcnt lgkmcnt(0)')
        k(f'v_add_f32 v{v}, v{v}, v{tmp}')


def rnd2(k, a, b, t):
    k(f'v_cvt_pk_bf16_f32 v{t}, v{a}, v{b}')
    k(f'v_lshlrev_b32 v{a}, 16, v{t}')
    k(f'v_and_b32 v{b}, 0xffff0000, v{t}')


def poll(k, cnt_off_sgpr, target, tag):
    lab = f'.poll_{tag}'
    k('v_lshrrev_b32 v7, 6, v0')
    k('s_nop 0')
    k('v_readfirstlane_b32 s33, v7')
    k('s_nop 3')
    k('s_cmp_lg_u32 s33, 0')
    k(f's_cbranch_scc1 {lab}_done')
    k('v_mov_b32 v7, 0')
    k.label(lab)
    k(f'buffer_load_dword v6, v7, s[40:43], {cnt_off_sgpr} offen sc1')
    k('s_waitcnt vmcnt(0)')
    k('v_readfirstlane_b32 s33, v6')
    k('s_nop 3')
    k(f's_cmp_ge_u32 s33, {target}')
    k(f's_cbranch_scc1 {lab}_done')
    k('s_sleep 8')
    k(f's_branch {lab}')
    k.label(f'{lab}_done')
    k('s_barrier')


def row_body(k, mode, wgs, rpw_log2, fused):
    k(f's_load_dwordx2 s[4:5], s[0:1], {A_X}')
    k(f's_load_dwordx2 s[6:7], s[0:1], {WS}')
    k(f's_load_dwordx2 s[28:29], s[0:1], {OUT}')
    k(f's_load_dwordx2 s[34:35], s[0:1], {DBG}')
    k('v_lshrrev_b32 v1, 5, v0')
    k(f's_lshl_b32 s3, {wgs}, {rpw_log2}')
    k('v_add_u32 v1, s3, v1')
    k('v_and_b32 v2, 31, v0')
    k('s_movk_i32 s30, 1152')
    k('v_mul_lo_u32 v3, v1, s30')
    k('v_lshl_add_u32 v3, v2, 2, v3')
    k('v_lshlrev_b32 v4, 3, v2')
    k('s_waitcnt lgkmcnt(0)')
    XSZ = 2048 * 576 * 2
    srd(k, 12, 6, 3456 * 4, L.MOD)
    if mode == 'ln1':
        srd(k, 40, 34, 256)
        srd(k, 8, 4, XSZ)
        srd(k, 16, 6, XSZ, L.H1)
    elif mode == 'ln2':
        srd(k, 40, 6, 16384, L.CNT)
        srd(k, 8, 4, XSZ)
        srd(k, 16, 6, XSZ, L.H2)
        srd(k, 20, 6, XSZ, L.X1)
        srd(k, 24, 6, XSZ * 4, L.P1)
    else:
        srd(k, 40, 6, 16384, L.CNT + 16384)
        srd(k, 8, 6, XSZ, L.X1)
        srd(k, 16, 28, XSZ)
        srd(k, 24, 6, XSZ * 4, L.P2)
    X, SH, SCL, GA, PP = 20, 40, 60, 80, 100
    for i in range(9):
        k(f'buffer_load_dword v{8+i}, v3, s[8:11], 0 offen offset:{128*i}')
    sh_off, sc_off, g_off = {'ln1': (0, 576, None), 'ln2': (1728, 2304, 1152), 'fin': (None, None, 2880)}[mode]
    def load_mod(sc):
        k(f's_movk_i32 s31, {sh_off*4}')
        for i in range(9):
            k(f'buffer_load_dwordx2 v[{SH+2*i}:{SH+2*i+1}], v4, s[12:15], s31 offen offset:{256*i}{sc}')
        k(f's_movk_i32 s31, {sc_off*4}')
        for i in range(9):
            k(f'buffer_load_dwordx2 v[{SCL+2*i}:{SCL+2*i+1}], v4, s[12:15], s31 offen offset:{256*i}{sc}')
    late = fused and mode == 'ln1'
    if sh_off is not None and not late:
        load_mod('')
    if g_off is not None:
        k(f's_movk_i32 s31, {g_off*4}')
        for i in range(9):
            k(f'buffer_load_dwordx2 v[{GA+2*i}:{GA+2*i+1}], v4, s[12:15], s31 offen offset:{256*i}')
        k(f's_lshr_b32 s32, {wgs}, {7 - rpw_log2}')
        k('s_lshl_b32 s32, s32, 8')
        poll(k, 's32', 16, mode)
        for s in range(4):
            k(f's_mov_b32 s31, {s * XSZ}')
            for i in range(9):
                k(f'buffer_load_dword v{PP+36+9*s+i}, v3, s[24:27], s31 offen offset:{128*i} sc1')
    k('s_waitcnt vmcnt(0)')
    for i in range(9):
        k(f'v_lshlrev_b32 v{X+2*i}, 16, v{8+i}')
        k(f'v_and_b32 v{X+2*i+1}, 0xffff0000, v{8+i}')
    if g_off is not None:
        for i in range(9):
            a_, b_ = PP + 2 * i, PP + 2 * i + 1
            for s in range(4):
                src = PP + 36 + 9 * s + i
                if s == 0:
                    k(f'v_lshlrev_b32 v{a_}, 16, v{src}')
                    k(f'v_and_b32 v{b_}, 0xffff0000, v{src}')
                else:
                    k(f'v_lshlrev_b32 v6, 16, v{src}')
                    k(f'v_and_b32 v7, 0xffff0000, v{src}')
                    k(f'v_add_f32 v{a_}, v{a_}, v6')
                    k(f'v_add_f32 v{b_}, v{b_}, v7')
        for i in range(9):
            a, b = PP + 2 * i, PP + 2 * i + 1
            rnd2(k, a, b, 6)
            k(f'v_mul_f32 v{a}, v{GA+2*i}, v{a}')
            k(f'v_mul_f32 v{b}, v{GA+2*i+1}, v{b}')
            rnd2(k, a, b, 6)
            k(f'v_add_f32 v{X+2*i}, v{X+2*i}, v{a}')
            k(f'v_add_f32 v{X+2*i+1}, v{X+2*i+1}, v{b}')
            k(f'v_cvt_pk_bf16_f32 v{8+i}, v{X+2*i}, v{X+2*i+1}')
            k(f'v_lshlrev_b32 v{X+2*i}, 16, v{8+i}')
            k(f'v_and_b32 v{X+2*i+1}, 0xffff0000, v{8+i}')
        dst = 's[20:23]' if mode == 'ln2' else 's[16:19]'
        for i in range(9):
            k(f'buffer_store_dword v{8+i}, v3, {dst}, 0 offen offset:{128*i}')
    if mode != 'fin':
        k(f'v_add_f32 v6, v{X}, v{X+1}')
        for j in range(2, 18):
            k(f'v_add_f32 v6, v6, v{X+j}')
        half_reduce(k, 6, 7)
        k('s_mov_b32 s30, 0x%08x' % struct.unpack('<I', struct.pack('<f', 1.0/576))[0])
        k('v_mul_f32 v6, s30, v6')
        k(f'v_sub_f32 v7, v{X}, v6')
        k('v_mul_f32 v18, v7, v7')
        for j in range(1, 18):
            k(f'v_sub_f32 v7, v{X+j}, v6')
            k('v_fmac_f32 v18, v7, v7')
        half_reduce(k, 18, 7)
        k('v_mul_f32 v18, s30, v18')
        rnd2(k, 6, 18, 7)
        k('s_mov_b32 s30, 0x3727c5ac')
        k('v_add_f32 v18, s30, v18')
        k('v_cvt_pk_bf16_f32 v7, v18, v18')
        k('v_lshlrev_b32 v18, 16, v7')
        k('v_sqrt_f32 v18, v18')
        k('s_nop 0')
        k('v_cvt_pk_bf16_f32 v7, v18, v18')
        k('v_lshlrev_b32 v18, 16, v7')
        k('v_rcp_f32 v18, v18')
        k('s_nop 0')
        if late:
            k('v_mov_b32 v19, v6')
            poll(k, '0', 27, mode)
            k('v_mov_b32 v6, v19')
            load_mod(' sc1')
            k('s_waitcnt vmcnt(0)')
        for i in range(9):
            a, b = X + 2 * i, X + 2 * i + 1
            k(f'v_sub_f32 v{a}, v{a}, v6')
            k(f'v_sub_f32 v{b}, v{b}, v6')
            rnd2(k, a, b, 7)
            k(f'v_mul_f32 v{a}, v{a}, v18')
            k(f'v_mul_f32 v{b}, v{b}, v18')
            rnd2(k, a, b, 7)
            k(f'v_add_f32 v{SCL+2*i}, 1.0, v{SCL+2*i}')
            k(f'v_add_f32 v{SCL+2*i+1}, 1.0, v{SCL+2*i+1}')
            rnd2(k, SCL + 2 * i, SCL + 2 * i + 1, 7)
            k(f'v_mul_f32 v{a}, v{a}, v{SCL+2*i}')
            k(f'v_mul_f32 v{b}, v{b}, v{SCL+2*i+1}')
            rnd2(k, a, b, 7)
            k(f'v_add_f32 v{a}, v{a}, v{SH+2*i}')
            k(f'v_add_f32 v{b}, v{b}, v{SH+2*i+1}')
            k(f'v_cvt_pk_bf16_f32 v{PP+i}, v{a}, v{b}')
        for i in range(9):
            k(f'buffer_store_dword v{PP+i}, v3, s[16:19], 0 offen offset:{128*i}')


def k_row(mode):
    name = {'ln1': 'ln1_kernel', 'ln2': 'ln2_kernel', 'fin': 'fin_kernel'}[mode]
    k = K(name)
    end = f'.{name}_end'
    k('s_cmp_ge_u32 s2, 256')
    k(f's_cbranch_scc1 {end}')
    row_body(k, mode, 's2', 3, False)
    k.label(end)
    k('s_endpgm')
    return k.text(176, 48)
```

```python
import sys, os
sys.path.insert(0, os.path.dirname(os.path.abspath(__file__)))
import small, attn
try:
    import gemm
except ImportError:
    gemm = None
NAME = 'adaLN_cond__mha_block_cached__glu_gated_reglu__prompt'
ref = open(f'cdna_kernels/{NAME}.s.ref').read().split('\n')
hdr = [l for l in ref if l.startswith(';') and '@launch' not in l and 'Override launch' not in l and 'grid=ceil' not in l]
launch = [
    ('mod_kernel', 27 + 64, 1024, 8192),
    ('attn_kernel', 256, 256, 163840),
    ('wo_kernel', 384, 512, gemm.LDS),
    ('ffn1_kernel', 256, 512, gemm.LDS),
    ('down_kernel', 384, 512, gemm.LDS),
]
body = [small.k_mod(), attn.k_attn(), gemm.k_gemm('wo'), gemm.k_gemm('ffn1'), gemm.k_gemm('down')]
out = '\n'.join(hdr) + '\n'
for n, g, b, l in launch:
    out += f'; @launch kernel={n} grid=({g},1,1) block=({b},1,1) lds={l}\n'
out += '.amdgcn_target "amdgcn-amd-amdhsa--gfx950"\n'
out += '\n'.join(body)
dst = sys.argv[1] if len(sys.argv) > 1 else f'cdna_kernels/{NAME}.s'
open(dst, 'w').write(out)
print('wrote', dst, len(out), 'bytes', out.count('\n'), 'lines')
```

```python
from fw import *
import layout as L
import struct, math

def f32(x):
    return '0x%08x' % struct.unpack('<I', struct.pack('<f', x))[0]

AK = 16
AV = 24
DK = 28
DV = 32
LSUM = 36
USUM = 38
ET = 40
FT = 48
SB = 64
NM = 128
PB = 160
FP = 192
PR = 224
NPOOL = 8
LAG = 7

KRING, VRING, XTRA = 0, 65536, 131072


def S(par, qb, r=0): return SB + par * 32 + qb * 16 + r
def P(par, qb, r=0): return PB + par * 16 + qb * 8 + r
def Oacc(db, qb): return (db * 2 + qb) * 16
def Qreg(qb, s): return 128 + (qb * 8 + s) * 4
def vr(b, n): return f'v[{b}:{b+n-1}]'
def ar(b, n): return f'a[{b}:{b+n-1}]'


import os
DIAG = os.environ.get('DIAG')
AEXP = os.environ.get('AEXP', '')
def stamp(k, i):
    if DIAG:
        k(f's_memtime s[{50+2*i}:{51+2*i}]')
        if i == 0: k('s_memrealtime s[74:75]')
        k('s_waitcnt lgkmcnt(0)')

def stamp_out(k, last, endlabel, wg=77):
    if DIAG:
        k('s_waitcnt vmcnt(0)')
        stamp(k, last)
        k('s_memrealtime s[76:77]')
        k(f's_load_dwordx2 s[40:41], s[0:1], {DBG}')
        k('s_waitcnt lgkmcnt(0)')
        srd(k, 40, 40, 256)
        lab = k.newlabel('st')
        k(f's_cmp_lg_u32 s2, {wg}')
        k(f's_cbranch_scc1 {lab}')
        k('s_cmp_lg_u32 s3, 0')
        k(f's_cbranch_scc1 {lab}')
        k('v_mov_b32 v1, 0')
        for i in range(28):
            k(f'v_mov_b32 v2, s{50+i}')
            k(f'buffer_store_dword v2, v1, s[40:43], 0 offen offset:{128+4*i}')
        k.label(lab)

def k_attn():
    k = K('attn_kernel')
    k('s_cmp_ge_u32 s2, 256')
    k('s_cbranch_scc1 .attn_end')
    stamp(k, 0)
    k(f's_load_dwordx4 s[4:7], s[0:1], {A_K}')
    k(f's_load_dwordx2 s[32:33], s[0:1], {A_WQ}')
    k(f's_load_dwordx2 s[34:35], s[0:1], {WS}')
    k('v_lshrrev_b32 v1, 6, v0')
    k('v_and_b32 v2, 63, v0')
    k('s_nop 0')
    k('v_readfirstlane_b32 s3, v1')
    k('s_and_b32 s24, s2, 7')
    k('s_lshl_b32 s24, s24, 2')
    k('s_bfe_u32 s25, s2, 0x20003')
    k('s_add_u32 s24, s24, s25')
    k('s_lshr_b32 s25, s2, 5')
    k('s_lshl_b32 s26, s3, 10')
    k('s_waitcnt lgkmcnt(0)')
    k('s_lshl_b32 s31, s24, 19')
    for d, b in ((8, 4), (12, 6)):
        k(f's_add_u32 s{d}, s{b}, s31')
        k(f's_addc_u32 s{d+1}, s{b+1}, 0')
        k(f's_sub_u32 s{d+2}, 0x1000000, s31')
        k(f's_mov_b32 s{d+3}, 0x00020000')
    srd(k, 16, 32, 576 * 4096 * 2)
    srd(k, 20, 34, 2048 * 576 * 2, L.H1)
    k('v_and_b32 v3, 15, v2')
    k('v_lshrrev_b32 v4, 4, v2')
    k('v_lshrrev_b32 v5, 5, v2')
    k('v_and_b32 v6, 31, v2')
    k('v_lshrrev_b32 v7, 2, v3')
    k('v_and_b32 v8, 3, v2')
    k('v_xor_b32 v9, v5, v3')
    k('v_lshlrev_b32 v9, 4, v9')
    k('v_lshl_add_u32 v9, v6, 8, v9')
    for s in range(8):
        k(f'v_xor_b32 v{AK+s}, {s << 5}, v9')
    k('v_and_b32 v10, 1, v4')
    k('v_lshlrev_b32 v10, 1, v10')
    k('v_lshrrev_b32 v11, 1, v8')
    k('v_add_u32 v10, v10, v11')
    k('v_lshlrev_b32 v10, 4, v10')
    k('v_and_b32 v11, 1, v2')
    k('v_lshl_add_u32 v10, v11, 3, v10')
    k('v_lshl_add_u32 v10, v7, 8, v10')
    for db in range(4):
        k(f'v_xor_b32 v11, {db}, v7')
        k(f'v_lshl_add_u32 v11, v11, 6, v10')
        k(f'v_lshl_add_u32 v{PR+db}, v5, 11, v11')
        k(f'v_lshl_add_u32 v11, v5, 10, v11')
        k(f'v_add_u32 v{AV+db}, {VRING}, v11')
    k('s_lshl_b32 s31, s3, 2')
    k('v_add_u32 v9, s31, v4')
    k('v_xor_b32 v10, v3, v9')
    k('v_lshlrev_b32 v10, 4, v10')
    k('v_lshlrev_b32 v11, 2, v4')
    k('v_xor_b32 v11, v3, v11')
    k('v_lshlrev_b32 v11, 4, v11')
    k('s_lshl_b32 s31, s24, 8')
    for n in range(4):
        k(f'v_add_u32 v12, {16*n}, v9')
        k(f'v_lshl_add_u32 v{DK+n}, v12, 8, v10')
        k(f'v_lshl_add_u32 v{DV+n}, v12, 8, v11')
        k(f'v_lshl_add_u32 v{PR+6+n}, v12, 13, v11')
        k(f'v_add_u32 v{PR+6+n}, s31, v{PR+6+n}')
    k('s_lshl_b32 s31, s25, 8')
    k('s_lshl_b32 s36, s3, 6')
    k('s_add_u32 s31, s31, s36')
    k('s_mov_b32 s37, s31')
    k('v_lshrrev_b32 v9, 2, v2')
    k('v_add_u32 v9, s31, v9')
    k('s_movk_i32 s36, 1152')
    k('v_mul_lo_u32 v9, v9, s36')
    k('v_xor_b32 v10, v8, v4')
    k('v_lshl_add_u32 v9, v10, 4, v9')
    for n in range(4):
        k(f'v_add_u32 v{PR+18+n}, {n*16*1152}, v9')
    k('v_lshrrev_b32 v9, 2, v6')
    k('v_and_b32 v9, 3, v9')
    k('v_xor_b32 v9, v5, v9')
    k('v_lshlrev_b32 v9, 4, v9')
    k('v_lshl_add_u32 v9, v6, 6, v9')
    k('s_lshl_b32 s36, s3, 12')
    k(f'v_add_u32 v{PR+4}, s36, v9')
    k(f'v_xor_b32 v{PR+5}, 32, v{PR+4}')
    k('s_lshl_b32 s38, s3, 12')

    def dma(tag, vo, srdreg, soff, ldsoff):
        k(f's_add_u32 m0, s26, {ldsoff}')
        k('s_nop 0')
        k.vmem(tag, f'buffer_load_dwordx4 v{vo}, s[{srdreg}:{srdreg+3}], {soff} offen lds')

    qslots = [40960, 106496, 131072, 16384, 81920]
    fcount = [0]
    def pool():
        b = FP + (fcount[0] % NPOOL) * 4
        fcount[0] += 1
        return b
    def Qacc(db, qb): return SB + (db * 2 + qb) * 16
    pf = {}
    def padd(pos, fn, prio=5):
        pf.setdefault(pos, []).append((prio, len(pf.get(pos, [])), fn))
    pm = {}
    QL = 6
    bpos = lambda j: 16 * j - QL - 1
    PS = -200
    def q_stage(j, p0, step):
        base = qslots[j % 5]
        p = p0
        for n in range(4):
            padd(p, lambda n=n: k(f's_add_u32 m0, s38, {base + n * 1024}'), 2)
            padd(p + step, lambda n=n: k.vmem(('q', j), f'buffer_load_dwordx4 v{PR+18+n}, s[20:23], s39 offen lds'), 2)
            p += 2 * step
        for m in range(2):
            padd(p, lambda m=m: k(f's_add_u32 m0, s26, {base + 16384 + m * 4096}'), 2)
            padd(p + step, lambda m=m: k.vmem(('q', j), f'buffer_load_dwordx4 v{PR+6+m}, s[16:19], s36 offen lds'), 2)
            p += 2 * step
        padd(p, lambda: k('s_add_u32 s39, s39, 64'), 2)
        padd(p, lambda: k(f's_add_u32 s36, s36, {32*8192}'), 2)
    def kv_stage(t, p0, step):
        p = p0
        for n in range(8):
            isv = n // 4
            padd(p, lambda n=n, isv=isv: k(f's_add_u32 m0, s26, {(VRING if isv else KRING) + t * 16384 + (n % 4) * 4096}'), 2)
            padd(p + step, lambda n=n, isv=isv: k.vmem(('kv', t), f'buffer_load_dwordx4 v{(DV if isv else DK) + n % 4}, s[{12 if isv else 8}:{15 if isv else 11}], {"s27" if t else "0"} offen lds'), 2)
            p += 2 * step
    k('s_mov_b32 s39, 0')
    k('s_mov_b32 s36, 0')
    k('s_mov_b32 s27, 16384')
    for j in range(3):
        q_stage(j, PS + 20 * j, 1)
    for j in range(18):
        def bar(j=j):
            k.wait(vm=('q', j))
            k('s_barrier')
            for db in range(4):
                k(f'v_add_u32 v{PR+10+(j%2)*4+db}, {qslots[j%5]+16384}, v{PR+db}')
        padd(bpos(j), bar, 0)
        if j + 3 < 18:
            q_stage(j + 3, bpos(j) + 1, 1)
        if j == 15:
            kv_stage(0, bpos(j) + 1, 1)
        if j == 16:
            kv_stage(1, bpos(j) + 1, 1)
        for s_ in range(2):
            for qb in range(2):
                hb = 128 + ((j % 2) * 4 + s_ * 2 + qb) * 4
                padd(max(bpos(j) + 1, 16 * j + 8 * s_ - QL), lambda j=j, s_=s_, qb=qb, hb=hb: k.lds(('hf', j, s_, qb),
                     f'ds_read_b128 {ar(hb,4)}, v{PR+4+s_} offset:{qslots[j%5] % 65536 + qb*2048}' if qslots[j % 5] < 65536 else
                     f'ds_read_b128 {ar(hb,4)}, v{PR+22+s_} offset:{qslots[j%5] - 81920 + qb*2048}'), 1)
            for db in range(4):
                b = pool(); use = 16 * j + (s_ * 4 + db) * 2
                av = PR + 10 + (j % 2) * 4 + db
                padd(use - QL, lambda j=j, s_=s_, db=db, b=b, av=av: k.lds(('wf', j, s_, db), f'ds_read_b64_tr_b16 {vr(b,2)}, v{av} offset:{s_*4096}'), 1)
                padd(use - QL + 1, lambda j=j, s_=s_, db=db, b=b, av=av: k.lds(('wf', j, s_, db), f'ds_read_b64_tr_b16 {vr(b+2,2)}, v{av} offset:{s_*4096+1024}'), 1)
                for qb in range(2):
                    hb = 128 + ((j % 2) * 4 + s_ * 2 + qb) * 4
                    d = vr(Qacc(db, qb), 16)
                    c = '0' if (j == 0 and s_ == 0) else d
                    pm[use + qb] = (f'v_mfma_f32_32x32x16_bf16 {d}, {vr(b,4)}, {ar(hb,4)}, {c}', [('wf', j, s_, db), ('hf', j, s_, qb)])
    for s_ in range(2):
        k(f'v_add_u32 v{PR+22+s_}, 81920, v{PR+4+s_}')
    for r in range(128):
        padd(40 + r, lambda r=r: k(f'v_accvgpr_write_b32 a{r}, 0'), 4)
    stamp(k, 1)
    for pos in range(PS, 288):
        if pos == 0: stamp(k, 2)
        if pos == 96: stamp(k, 3)
        if pos in pm:
            txt, nl = pm[pos]
            k.wait(lg=nl)
            k(txt)
        elif pos in pf:
            k('s_nop 0')
        for prio, _, fn in sorted(pf.get(pos, []), key=lambda x: (x[0], x[1])):
            fn()
    k('s_nop 15')
    k('s_nop 7')
    stamp(k, 4)
    k(f's_mov_b32 s36, {f32(math.log2(math.e) / math.sqrt(128.0))}')
    for db in range(4):
        for qb in range(2):
            q = Qacc(db, qb)
            for r in range(16):
                k(f'v_mul_f32 v{q+r}, s36, v{q+r}')
            for p in range(8):
                k(f'v_cvt_pk_bf16_f32 v{q+p}, v{q+2*p}, v{q+2*p+1}')
            k('s_nop 1')
            for g0 in (0, 2):
                x, y = q + 2 * g0, q + 2 * g0 + 2
                k(f'v_permlane32_swap_b32 v{x}, v{y}')
                k(f'v_permlane32_swap_b32 v{x+1}, v{y+1}')
            k('s_nop 0')
            for p in range(8):
                k(f'v_accvgpr_write_b32 a{Qreg(qb, 2*db + p//4) + p%4}, v{q+p}')
    for r in range(32):
        k(f'v_mov_b32 v{NM+r}, 0')
    k(f'v_mov_b32 v{LSUM}, 0')
    k(f'v_mov_b32 v{LSUM+1}, 0')
    k('s_mov_b32 s29, -1.0')
    k('s_mov_b32 s30, 0xff800000')
    k('s_mov_b32 s27, 32768')
    k('s_mov_b32 s28, 8')
    k('s_cmp_ge_u32 s3, 2')
    for i in range(3):
        k(f's_cselect_b32 s{96+i}, s{12+i}, s{8+i}')
    k('s_mov_b32 s99, 0x00020000')
    k('s_and_b32 s31, s3, 1')
    k('s_lshl_b32 s31, s31, 13')
    k(f's_add_u32 s31, s31, {int(os.environ.get("PFD", "4"))*16384}')
    k('v_lshlrev_b32 v14, 7, v2')
    k('v_add_u32 v14, s31, v14')
    k.wait_all()
    stamp(k, 5)
    if 'nopf' not in AEXP:
        k(f's_load_dwordx2 s[80:81], s[0:1], {A_WO}')
        k(f's_load_dwordx4 s[84:87], s[0:1], {B_WG}')
        k(f's_load_dwordx2 s[88:89], s[0:1], {B_WD}')
        k('s_lshl_b32 s31, s2, 2')
        k('s_add_u32 s31, s31, s3')
        k('s_lshl_b32 s31, s31, 13')
        k(f'v_lshlrev_b32 v{PR}, 7, v2')
        k('s_waitcnt lgkmcnt(0)')
        for i, (b, sz) in enumerate(((80, 4096*576*2), (84, 576*4608*2), (86, 576*4608*2), (88, 4608*576*2))):
            srd(k, 92, b, sz)
            k(f'buffer_load_dword v{PR+1+i}, v{PR}, s[92:95], s31 offen')

    NIT = 8 * 4
    G0 = -64
    fills = {}
    def add(pos, fn, prio=5):
        fills.setdefault(pos, []).append((prio, len(fills.get(pos, [])), fn))
    mf = {}
    fragbuf = {}
    usel = []
    for i in range(-1, NIT):
        u = i + 1
        for s in range(8):
            usel.append((32 * i + 2 * s, ('K', u, s)))
        if i >= 0:
            for ks in range(2):
                for db in range(4):
                    usel.append((32 * i + 16 + 2 * (4 * ks + db), ('V', i, ks, db)))
    fcount[0] = 0
    for pos, tag in usel:
        b = pool(); fragbuf[tag] = b
        if tag[0] == 'K':
            _, u, s = tag
            off = KRING + ((u // 2) % 4) * 16384 + (u % 2) * 8192
            add(pos - LAG, lambda tag=tag, b=b, s=s, off=off: k.lds(tag, f'ds_read_b128 {vr(b,4)}, v{AK+s} offset:{off}'), 1)
        else:
            _, u, ks, db = tag
            off = ((u // 2) % 4) * 16384 + (u % 2) * 8192 + ks * 4096
            add(pos - LAG, lambda tag=tag, b=b, db=db, off=off: k.lds(tag, f'ds_read_b64_tr_b16 {vr(b,2)}, v{AV+db} offset:{off}'), 1)
            add(pos - LAG + 1, lambda tag=tag, b=b, db=db, off=off: k.lds(tag, f'ds_read_b64_tr_b16 {vr(b+2,2)}, v{AV+db} offset:{off+2048}'), 1)
    for i in range(-1, NIT):
        u = i + 1
        for s in range(8):
            for qb in range(2):
                d = vr(S(u % 2, qb), 16)
                c = vr(NM + 16 * qb, 16) if s == 0 else d
                mf[32 * i + 2 * s + qb] = (f'v_mfma_f32_32x32x16_bf16 {d}, {vr(fragbuf[("K",u,s)],4)}, {ar(Qreg(qb,s),4)}, {c}', ('K', u, s))
        if i >= 0:
            for ks in range(2):
                for db in range(4):
                    for qb in range(2):
                        o = ar(Oacc(db, qb), 16)
                        mf[32 * i + 16 + 2 * (4 * ks + db) + qb] = (
                            f'v_mfma_f32_32x32x16_bf16 {o}, {vr(fragbuf[("V",i,ks,db)],4)}, {vr(P(i%2,qb,4*ks),4)}, {o}', ('V', i, ks, db))
    def sm_ops(par):
        ops = []
        n = 0
        pend = None
        for qb in range(2):
            for j in range(8):
                a, b = ET + (2 * n) % 8, ET + (2 * n + 1) % 8
                n += 1
                ops.append(f'v_exp_f32 v{a}, v{S(par,qb,2*j)}')
                ops.append(f'v_exp_f32 v{b}, v{S(par,qb,2*j+1)}')
                if pend: ops.extend(pend)
                if j == 0:
                    pend = [f'v_add_f32 v{USUM+qb}, v{a}, v{b}']
                else:
                    pend = [f'v_add_f32 v{USUM+qb}, v{USUM+qb}, v{a}', f'v_add_f32 v{USUM+qb}, v{USUM+qb}, v{b}']
                pend.append(f'v_cvt_pk_bf16_f32 v{P(par,qb,j)}, v{a}, v{b}')
        ops.append('s_nop 0')
        ops.extend(pend)
        return ops
    for t in range(0, NIT // 2 + 1):
        bp = 32 * (2 * t - 1) - LAG - 1
        def bar(t=t):
            k.wait(vm=('kv', t))
            k('s_barrier')
        add(bp, bar, 0)
        DSP = int(os.environ.get('DSP', '2'))
        for n in range(8):
            slot = (t + 2) % 4
            isv = n // 4
            lo = (VRING if isv else KRING) + slot * 16384 + (n % 4) * 4096
            add(bp + 1 + DSP * n, lambda lo=lo: k(f's_add_u32 m0, s26, {lo}'), 2)
            if 'nodma' not in AEXP: add(bp + 2 + DSP * n, lambda t=t, n=n, isv=isv: k.vmem(('kv', t + 2),
                f'buffer_load_dwordx4 v{(DV if isv else DK) + n % 4}, s[{12 if isv else 8}:{15 if isv else 11}], s27 offen lds'), 2)
        add(bp + 3 + DSP * 8, lambda: k('s_add_u32 s27, s27, 16384'), 2)
    BUD = int(os.environ.get('BUD', '24'))
    for u in range(0, NIT + 1):
        ops = sm_ops(u % 2)
        w0, w1 = 32 * (u - 1) + 18, 32 * u + 14
        cost = [8 if 'v_exp' in o else 4 for o in ops]
        sh = 256 * (1 - u // 8)
        used = {p: 4 * len([f for f in fills.get(p + sh, []) if f[0] < 3]) + (4 if p % 2 == 1 else 0) for p in range(w0, w1 + 1)}
        bud = BUD
        while True:
            plan = []; p = w0; rem = bud - used[p]; ok = True
            for o, c in zip(ops, cost):
                while rem < c:
                    p += 1
                    if p > w1: ok = False; break
                    rem = bud - used[p]
                if not ok: break
                plan.append((p, o)); rem -= c
            if ok: break
            bud += 4
        for p, o in plan:
            add(p, lambda o=o: k(o), 3)
        def chk(u=u):
            site = u % 8
            k(f'v_max_f32 v{ET}, v{USUM}, v{USUM+1}')
            k(f'v_cmp_lt_f32 vcc, s29, v{ET}')
            k(f's_cbranch_vccnz .attn_fbs{site}')
            k.label(f'.attn_back{site}')
            k(f'v_add_f32 v{LSUM}, v{LSUM}, v{USUM}')
            k(f'v_add_f32 v{LSUM+1}, v{LSUM+1}, v{USUM+1}')
        add(32 * u + 15, chk, 9)
    marks = {}
    k.vm = [('kv', 0)] * 8 + [('kv', 1)] * 8
    if 'nodma' in AEXP: k.vm = []
    add(-16, lambda: k('s_nop 15'), 0)
    for pos in range(G0, 32 * NIT):
        if pos % 256 == 0:
            marks[pos // 256] = len(k.lines)
        if pos in mf:
            txt, need = mf[pos]
            k.wait(lg=need)
            k(txt)
        for prio, _, fn in sorted(fills.get(pos, []), key=lambda x: (x[0], x[1])):
            fn()
    marks[NIT // 8] = len(k.lines)
    per0 = k.lines[marks[0]:marks[1]]
    per1 = k.lines[marks[1]:marks[2]]
    per2 = k.lines[marks[2]:marks[3]]
    assert per1 == per2, 'not periodic'
    if per0 != per1:
        diff = [(a, b) for a, b in zip(per0, per1) if a != b]
        print('period0 differs:', len(per0), len(per1), diff[:10])
        raise SystemExit
    k.lines = k.lines[:marks[0]]
    k.label('.attn_loop')
    k.lines += per0
    k('s_sub_u32 s28, s28, 1')
    k('s_cmp_lg_u32 s28, 0')
    k('s_cbranch_scc1 .attn_loop')
    k('s_nop 15')
    k('s_nop 7')
    k('s_waitcnt vmcnt(0) lgkmcnt(0)')
    stamp(k, 6)
    srd(k, 16, 34, 2048 * 4096 * 2, L.O)
    k('v_add_u32 v9, s37, v6')
    k('v_lshlrev_b32 v9, 13, v9')
    k('v_lshl_add_u32 v9, v5, 4, v9')
    k('s_lshl_b32 s31, s24, 8')
    k('v_add_u32 v9, s31, v9')
    k(f'v_add_u32 v10, {32*8192}, v9')
    for qb in range(2):
        k(f'v_mov_b32 v{FT}, v{LSUM+qb}')
        k('s_nop 1')
        k(f'v_permlane32_swap_b32 v{FT}, v{LSUM+qb}')
        k('s_nop 0')
        k(f'v_add_f32 v{FT}, v{FT}, v{LSUM+qb}')
        k(f'v_rcp_f32 v{FT+1+qb}, v{FT}')
    k('s_nop 0')
    n = 0
    for qb in range(2):
        for db in range(4):
            t = SB + (n % 4) * 24; n += 1
            for r in range(16):
                k(f'v_accvgpr_read_b32 v{t+r}, a{Oacc(db,qb)+r}')
            for r in range(16):
                k(f'v_mul_f32 v{t+r}, v{t+r}, v{FT+1+qb}')
            for p in range(8):
                k(f'v_cvt_pk_bf16_f32 v{t+16+p}, v{t+2*p}, v{t+2*p+1}')
            k('s_nop 1')
            for g0 in (0, 2):
                x, y = t + 16 + 2 * g0, t + 16 + 2 * g0 + 2
                k(f'v_permlane32_swap_b32 v{x}, v{y}')
                k(f'v_permlane32_swap_b32 v{x+1}, v{y+1}')
            for g0 in (0, 2):
                k(f'buffer_store_dwordx4 {vr(t+16+2*g0,4)}, v{9+qb}, s[16:19], 0 offen offset:{db*64+g0*16}')
    stamp_out(k, 7, '.attn_end')
    k.label('.attn_end')
    k('s_endpgm')
    for site in range(8):
        k.label(f'.attn_fbs{site}')
        k(f's_call_b64 s[40:41], .attn_fb{site%2}')
        k(f's_branch .attn_back{site}')
    for par in range(2):
        k.label(f'.attn_fb{par}')
        k('s_nop 15')
        k('s_nop 15')
        for qb in range(2):
            s0 = S(par, qb)
            k(f'v_max3_f32 v{FT}, v{s0}, v{s0+1}, v{s0+2}')
            for j in range(3, 15, 2):
                k(f'v_max3_f32 v{FT}, v{FT}, v{s0+j}, v{s0+j+1}')
            k(f'v_max_f32 v{FT}, v{FT}, v{s0+15}')
            k(f'v_mov_b32 v{FT+1}, v{FT}')
            k('s_nop 1')
            k(f'v_permlane32_swap_b32 v{FT}, v{FT+1}')
            k('s_nop 0')
            k(f'v_max_f32 v{FT}, v{FT}, v{FT+1}')
            k(f'v_max_f32 v{FT}, s30, v{FT}')
            k(f'v_max_f32 v{FT+1}, 0, v{FT}')
            k(f'v_sub_f32 v{FT+1}, 0, v{FT+1}')
            k(f'v_exp_f32 v{FT+1}, v{FT+1}')
            k(f'v_sub_f32 v{NM+16*qb}, v{NM+16*qb}, v{FT}')
            for r in range(1, 16):
                k(f'v_mov_b32 v{NM+16*qb+r}, v{NM+16*qb}')
            for r in range(16):
                k(f'v_sub_f32 v{s0+r}, v{s0+r}, v{FT}')
                k(f'v_sub_f32 v{S(1-par,qb,r)}, v{S(1-par,qb,r)}, v{FT}')
            k(f'v_mul_f32 v{LSUM+qb}, v{LSUM+qb}, v{FT+1}')
            for db in range(4):
                for r0 in range(0, 16, 8):
                    for r in range(8):
                        k(f'v_accvgpr_read_b32 v{FT+2+r}, a{Oacc(db,qb)+r0+r}')
                    for r in range(8):
                        k(f'v_mul_f32 v{FT+2+r}, v{FT+2+r}, v{FT+1}')
                    for r in range(8):
                        k(f'v_accvgpr_write_b32 a{Oacc(db,qb)+r0+r}, v{FT+2+r}')
        for o in sm_ops(par):
            k(o)
        k(f's_mov_b32 s29, {f32(65536.0)}')
        k('s_mov_b32 s30, 0')
        k('s_nop 3')
        k('s_setpc_b64 s[40:41]')
    return k.text(512, 102, 256)
```

```python
from fw import *
import layout as L
import struct

LOG2E = 0x3fb8aa3b


def k_mod():
    k = K('mod_kernel')
    k('s_cmp_ge_u32 s2, 27')
    k('s_cbranch_scc1 .mod_ln1')
    k(f's_load_dwordx2 s[34:35], s[0:1], {DBG}')
    k(f's_load_dwordx2 s[4:5], s[0:1], {C_}')
    k(f's_load_dwordx2 s[6:7], s[0:1], {WMOD}')
    k(f's_load_dwordx2 s[20:21], s[0:1], {WS}')
    k('v_lshrrev_b32 v1, 6, v0')
    k('v_and_b32 v2, 63, v0')
    k('s_nop 0')
    k('v_readfirstlane_b32 s3, v1')
    k('s_waitcnt lgkmcnt(0)')
    srd(k, 8, 4, 1152)
    srd(k, 12, 6, 576 * 3456 * 2)
    srd(k, 16, 20, 3456 * 4, L.MOD)
    srd(k, 44, 20, 32768, L.CNT)
    k('s_cmp_lg_u32 s2, 0')
    k('s_cbranch_scc1 .mod_nz')
    k('v_lshlrev_b32 v6, 8, v0')
    k('v_mov_b32 v7, 0')
    k('buffer_store_dword v7, v6, s[44:47], 0 offen')
    k.label('.mod_nz')
    k('s_mul_i32 s22, s3, 72')
    k('v_lshlrev_b32 v3, 1, v2')
    k('buffer_load_ushort v4, v3, s[8:11], s22 offen')
    k('s_mul_i32 s23, s3, 36*6912')
    k('s_lshl_b32 s24, s2, 8')
    k('s_add_u32 s23, s23, s24')
    k('v_lshlrev_b32 v5, 2, v2')
    for i in range(36):
        if i % 1 == 0:
            k(f's_add_u32 s25, s23, {i*6912}')
        k(f'buffer_load_dword v{16+i}, v5, s[12:15], s25 offen')
    k('s_waitcnt vmcnt(36)')
    k('v_lshlrev_b32 v4, 16, v4')
    k(f's_mov_b32 s26, {LOG2E}')
    k('v_mul_f32 v6, s26, v4')
    k('v_sub_f32 v6, 0, v6')
    k('v_exp_f32 v6, v6')
    k('s_nop 0')
    k('v_add_f32 v6, 1.0, v6')
    k('v_rcp_f32 v6, v6')
    k('s_nop 0')
    k('v_mul_f32 v6, v4, v6')
    k('v_cvt_pk_bf16_f32 v6, v6, v6')
    k('v_lshlrev_b32 v6, 16, v6')
    k('v_mov_b32 v8, 0')
    k('v_mov_b32 v9, 0')
    k('s_waitcnt vmcnt(0)')
    for i in range(36):
        k(f'v_readlane_b32 s27, v6, {i}')
        k(f'v_lshlrev_b32 v10, 16, v{16+i}')
        k(f'v_and_b32 v11, 0xffff0000, v{16+i}')
        k(f'v_fmac_f32 v8, s27, v10')
        k(f'v_fmac_f32 v9, s27, v11')
    k('v_lshlrev_b32 v12, 3, v0')
    k('ds_write_b64 v12, v[8:9]')
    k('s_waitcnt lgkmcnt(0)')
    k('s_barrier')
    k('s_cmp_lg_u32 s3, 0')
    k('s_cbranch_scc1 .mod_end')
    for i in range(16):
        k(f'ds_read_b64 v[{16+2*i}:{17+2*i}], v12 offset:{i*512}')
    k('s_waitcnt lgkmcnt(0)')
    for i in range(1, 16):
        k(f'v_add_f32 v16, v16, v{16+2*i}')
        k(f'v_add_f32 v17, v17, v{17+2*i}')
    k('v_cvt_pk_bf16_f32 v18, v16, v17')
    k('v_lshlrev_b32 v16, 16, v18')
    k('v_and_b32 v17, 0xffff0000, v18')
    k('s_lshl_b32 s24, s2, 9')
    k('buffer_store_dwordx2 v[16:17], v12, s[16:19], s24 offen sc1')
    srd(k, 40, 34, 256)
    k('v_mov_b32 v1, 1')
    k('v_mov_b32 v2, 0')
    k('s_waitcnt vmcnt(0)')
    k('s_mov_b64 exec, 1')
    k('buffer_atomic_add v1, v2, s[40:43], 0 offen sc1')
    k('s_endpgm')
    k.label('.mod_ln1')
    k('s_cmp_ge_u32 s2, 27+64')
    k('s_cbranch_scc1 .mod_end')
    k('s_sub_u32 s36, s2, 27')
    k(f's_load_dwordx2 s[44:45], s[0:1], {A_WQ}')
    k('v_lshlrev_b32 v120, 7, v0')
    k('s_lshl_b32 s37, s36, 17')
    k('s_waitcnt lgkmcnt(0)')
    srd(k, 44, 44, 576 * 4096 * 2)
    k('buffer_load_dword v121, v120, s[44:47], s37 offen')
    row_body(k, 'ln1', 's36', 5, True)
    k.label('.mod_end')
    k('s_endpgm')
    return k.text(128, 48)


def half_reduce(k, v, tmp):
    for m in (1, 2, 4, 8, 16):
        k(f'ds_swizzle_b32 v{tmp}, v{v} offset:{(m << 10) | 0x1f}')
        k('s_waitcnt lgkmcnt(0)')
        k(f'v_add_f32 v{v}, v{v}, v{tmp}')


def rnd2(k, a, b, t):
    k(f'v_cvt_pk_bf16_f32 v{t}, v{a}, v{b}')
    k(f'v_lshlrev_b32 v{a}, 16, v{t}')
    k(f'v_and_b32 v{b}, 0xffff0000, v{t}')


def poll(k, cnt_off_sgpr, target, tag):
    lab = f'.poll_{tag}'
    k('v_lshrrev_b32 v7, 6, v0')
    k('s_nop 0')
    k('v_readfirstlane_b32 s33, v7')
    k('s_nop 3')
    k('s_cmp_lg_u32 s33, 0')
    k(f's_cbranch_scc1 {lab}_done')
    k('v_mov_b32 v7, 0')
    k.label(lab)
    k(f'buffer_load_dword v6, v7, s[40:43], {cnt_off_sgpr} offen sc1')
    k('s_waitcnt vmcnt(0)')
    k('v_readfirstlane_b32 s33, v6')
    k('s_nop 3')
    k(f's_cmp_ge_u32 s33, {target}')
    k(f's_cbranch_scc1 {lab}_done')
    k('s_sleep 8')
    k(f's_branch {lab}')
    k.label(f'{lab}_done')
    k('s_barrier')


def row_body(k, mode, wgs, rpw_log2, fused):
    k(f's_load_dwordx2 s[4:5], s[0:1], {A_X}')
    k(f's_load_dwordx2 s[6:7], s[0:1], {WS}')
    k(f's_load_dwordx2 s[28:29], s[0:1], {OUT}')
    k(f's_load_dwordx2 s[34:35], s[0:1], {DBG}')
    k('v_lshrrev_b32 v1, 5, v0')
    k(f's_lshl_b32 s3, {wgs}, {rpw_log2}')
    k('v_add_u32 v1, s3, v1')
    k('v_and_b32 v2, 31, v0')
    k('s_movk_i32 s30, 1152')
    k('v_mul_lo_u32 v3, v1, s30')
    k('v_lshl_add_u32 v3, v2, 2, v3')
    k('v_lshlrev_b32 v4, 3, v2')
    k('s_waitcnt lgkmcnt(0)')
    XSZ = 2048 * 576 * 2
    srd(k, 12, 6, 3456 * 4, L.MOD)
    if mode == 'ln1':
        srd(k, 40, 34, 256)
        srd(k, 8, 4, XSZ)
        srd(k, 16, 6, XSZ, L.H1)
    elif mode == 'ln2':
        srd(k, 40, 6, 16384, L.CNT)
        srd(k, 8, 4, XSZ)
        srd(k, 16, 6, XSZ, L.H2)
        srd(k, 20, 6, XSZ, L.X1)
        srd(k, 24, 6, XSZ * 4, L.P1)
    else:
        srd(k, 40, 6, 16384, L.CNT + 16384)
        srd(k, 8, 6, XSZ, L.X1)
        srd(k, 16, 28, XSZ)
        srd(k, 24, 6, XSZ * 4, L.P2)
    X, SH, SCL, GA, PP = 20, 40, 60, 80, 100
    for i in range(9):
        k(f'buffer_load_dword v{8+i}, v3, s[8:11], 0 offen offset:{128*i}')
    sh_off, sc_off, g_off = {'ln1': (0, 576, None), 'ln2': (1728, 2304, 1152), 'fin': (None, None, 2880)}[mode]
    def load_mod(sc):
        k(f's_movk_i32 s31, {sh_off*4}')
        for i in range(9):
            k(f'buffer_load_dwordx2 v[{SH+2*i}:{SH+2*i+1}], v4, s[12:15], s31 offen offset:{256*i}{sc}')
        k(f's_movk_i32 s31, {sc_off*4}')
        for i in range(9):
            k(f'buffer_load_dwordx2 v[{SCL+2*i}:{SCL+2*i+1}], v4, s[12:15], s31 offen offset:{256*i}{sc}')
    late = fused and mode == 'ln1'
    if sh_off is not None and not late:
        load_mod('')
    if g_off is not None:
        k(f's_movk_i32 s31, {g_off*4}')
        for i in range(9):
            k(f'buffer_load_dwordx2 v[{GA+2*i}:{GA+2*i+1}], v4, s[12:15], s31 offen offset:{256*i}')
        k(f's_lshr_b32 s32, {wgs}, {7 - rpw_log2}')
        k('s_lshl_b32 s32, s32, 8')
        poll(k, 's32', 16, mode)
        for s in range(4):
            k(f's_mov_b32 s31, {s * XSZ}')
            for i in range(9):
                k(f'buffer_load_dword v{PP+36+9*s+i}, v3, s[24:27], s31 offen offset:{128*i} sc1')
    k('s_waitcnt vmcnt(0)')
    for i in range(9):
        k(f'v_lshlrev_b32 v{X+2*i}, 16, v{8+i}')
        k(f'v_and_b32 v{X+2*i+1}, 0xffff0000, v{8+i}')
    if g_off is not None:
        for i in range(9):
            a_, b_ = PP + 2 * i, PP + 2 * i + 1
            for s in range(4):
                src = PP + 36 + 9 * s + i
                if s == 0:
                    k(f'v_lshlrev_b32 v{a_}, 16, v{src}')
                    k(f'v_and_b32 v{b_}, 0xffff0000, v{src}')
                else:
                    k(f'v_lshlrev_b32 v6, 16, v{src}')
                    k(f'v_and_b32 v7, 0xffff0000, v{src}')
                    k(f'v_add_f32 v{a_}, v{a_}, v6')
                    k(f'v_add_f32 v{b_}, v{b_}, v7')
        for i in range(9):
            a, b = PP + 2 * i, PP + 2 * i + 1
            rnd2(k, a, b, 6)
            k(f'v_mul_f32 v{a}, v{GA+2*i}, v{a}')
            k(f'v_mul_f32 v{b}, v{GA+2*i+1}, v{b}')
            rnd2(k, a, b, 6)
            k(f'v_add_f32 v{X+2*i}, v{X+2*i}, v{a}')
            k(f'v_add_f32 v{X+2*i+1}, v{X+2*i+1}, v{b}')
            k(f'v_cvt_pk_bf16_f32 v{8+i}, v{X+2*i}, v{X+2*i+1}')
            k(f'v_lshlrev_b32 v{X+2*i}, 16, v{8+i}')
            k(f'v_and_b32 v{X+2*i+1}, 0xffff0000, v{8+i}')
        dst = 's[20:23]' if mode == 'ln2' else 's[16:19]'
        for i in range(9):
            k(f'buffer_store_dword v{8+i}, v3, {dst}, 0 offen offset:{128*i}')
    if mode != 'fin':
        k(f'v_add_f32 v6, v{X}, v{X+1}')
        for j in range(2, 18):
            k(f'v_add_f32 v6, v6, v{X+j}')
        half_reduce(k, 6, 7)
        k('s_mov_b32 s30, 0x%08x' % struct.unpack('<I', struct.pack('<f', 1.0/576))[0])
        k('v_mul_f32 v6, s30, v6')
        k(f'v_sub_f32 v7, v{X}, v6')
        k('v_mul_f32 v18, v7, v7')
        for j in range(1, 18):
            k(f'v_sub_f32 v7, v{X+j}, v6')
            k('v_fmac_f32 v18, v7, v7')
        half_reduce(k, 18, 7)
        k('v_mul_f32 v18, s30, v18')
        rnd2(k, 6, 18, 7)
        k('s_mov_b32 s30, 0x3727c5ac')
        k('v_add_f32 v18, s30, v18')
        k('v_cvt_pk_bf16_f32 v7, v18, v18')
        k('v_lshlrev_b32 v18, 16, v7')
        k('v_sqrt_f32 v18, v18')
        k('s_nop 0')
        k('v_cvt_pk_bf16_f32 v7, v18, v18')
        k('v_lshlrev_b32 v18, 16, v7')
        k('v_rcp_f32 v18, v18')
        k('s_nop 0')
        if late:
            k('v_mov_b32 v19, v6')
            poll(k, '0', 27, mode)
            k('v_mov_b32 v6, v19')
            load_mod(' sc1')
            k('s_waitcnt vmcnt(0)')
        for i in range(9):
            a, b = X + 2 * i, X + 2 * i + 1
            k(f'v_sub_f32 v{a}, v{a}, v6')
            k(f'v_sub_f32 v{b}, v{b}, v6')
            rnd2(k, a, b, 7)
            k(f'v_mul_f32 v{a}, v{a}, v18')
            k(f'v_mul_f32 v{b}, v{b}, v18')
            rnd2(k, a, b, 7)
            k(f'v_add_f32 v{SCL+2*i}, 1.0, v{SCL+2*i}')
            k(f'v_add_f32 v{SCL+2*i+1}, 1.0, v{SCL+2*i+1}')
            rnd2(k, SCL + 2 * i, SCL + 2 * i + 1, 7)
            k(f'v_mul_f32 v{a}, v{a}, v{SCL+2*i}')
            k(f'v_mul_f32 v{b}, v{b}, v{SCL+2*i+1}')
            rnd2(k, a, b, 7)
            k(f'v_add_f32 v{a}, v{a}, v{SH+2*i}')
            k(f'v_add_f32 v{b}, v{b}, v{SH+2*i+1}')
            k(f'v_cvt_pk_bf16_f32 v{PP+i}, v{a}, v{b}')
        for i in range(9):
            k(f'buffer_store_dword v{PP+i}, v3, s[16:19], 0 offen offset:{128*i}')


def k_row(mode):
    name = {'ln1': 'ln1_kernel', 'ln2': 'ln2_kernel', 'fin': 'fin_kernel'}[mode]
    k = K(name)
    end = f'.{name}_end'
    k('s_cmp_ge_u32 s2, 256')
    k(f's_cbranch_scc1 {end}')
    row_body(k, mode, 's2', 3, False)
    k.label(end)
    k('s_endpgm')
    return k.text(176, 48)
```
